```python
import torch

def _softmax(x, axis=-1):
    return torch.softmax(x, dim=axis)
def _gelu(x):
    return torch.nn.functional.gelu(x, approximate="tanh")
def _silu(x):
    return torch.nn.functional.silu(x)
def _sigmoid(x):
    return torch.sigmoid(x)
def _layernorm(x, axis=-1, eps=1e-5):
    m = x.mean(dim=axis, keepdim=True)
    v = x.var(dim=axis, keepdim=True, unbiased=False)
    return (x - m) / torch.sqrt(v + eps)
def _scatter_add(tgt, idx, src, axis=0):
    return tgt.clone().index_add_(axis, idx, src)
def _segment_sum(src, seg, n):
    out = torch.zeros((n,) + src.shape[1:], dtype=src.dtype)
    return out.index_add_(0, seg, src)
def _pad(x, pw):
    flat = tuple(v for pair in reversed(pw) for v in pair)
    return torch.nn.functional.pad(x, flat)

kernel_name = 'recurrent_scan__sliding_block_cached__swiglu_ffn__decode'

def setup_inputs():

    _w = (lambda a: (lambda t: t.to(torch.bfloat16) if t.is_floating_point() else t)(torch.as_tensor(a)))
    def _A_setup():
        B, Sq, D = 1, 1, 512
        Hq, Hkv, Sk, Dh = 32, 8, 65536, 128
        assert Hq % Hkv == 0, (Hq, Hkv)
        return {
            "x": _w((lambda *s: torch.randn(*s, dtype=torch.bfloat16) * 0.05)(B, Sq, D)),
            "k_cache": _w((lambda *s: torch.randn(*s, dtype=torch.bfloat16) * 1.6)(B, Hkv, Sk, Dh)),
            "v_cache": _w((lambda *s: torch.randn(*s, dtype=torch.bfloat16) * 0.2)(B, Hkv, Sk, Dh)),
            "wq": _w((lambda *s: torch.randn(*s, dtype=torch.bfloat16) * 1.6)(D, Hq * Dh) * (D ** -0.5)),
            "wo": _w((lambda *s: torch.randn(*s, dtype=torch.bfloat16) * 0.2)(Hq * Dh, D) * ((Hq * Dh) ** -0.5)),
        }
    _A_in = _A_setup()

    def _B_setup():
        B, S, D, F = 1, 1, 512, 1792
        return {
            "x": _w((lambda *s: torch.randn(*s, dtype=torch.bfloat16) * 0.05)(B, S, D)),
            "w_gate": _w((lambda *s: torch.randn(*s, dtype=torch.bfloat16) * 0.1)(D, F)),
            "w_up": _w((lambda *s: torch.randn(*s, dtype=torch.bfloat16) * 0.1)(D, F)),
            "w_down": _w((lambda *s: torch.randn(*s, dtype=torch.bfloat16) * 0.1)(F, D)),
        }
    _B_in = _B_setup()

    return {
        "A_x": _A_in["x"],
        "A_k_cache": _A_in["k_cache"],
        "A_v_cache": _A_in["v_cache"],
        "A_wq": _A_in["wq"],
        "A_wo": _A_in["wo"],
        "B_x": _B_in["x"],
        "B_w_gate": _B_in["w_gate"],
        "B_w_up": _B_in["w_up"],
        "B_w_down": _B_in["w_down"],
    }

def reference(A_x, A_k_cache, A_v_cache, A_wq, A_wo, B_x, B_w_gate, B_w_up, B_w_down):
    def _A_ref(x, k_cache, v_cache, wq, wo):
        B, Sq, D = x.shape
        Hq, Dh = 32, 128
        Hkv, Sk = k_cache.shape[1], k_cache.shape[2]
        W = min(4096, max(256, Sk // 4))
        rep = Hq // Hkv
        q = (lambda x, *d: x.permute(*d))((x @ wq).reshape(B, Sq, Hq, Dh), 0, 2, 1, 3)
        k = (lambda x, n, axis: torch.repeat_interleave(x, n, dim=axis))(k_cache[:, :, Sk - W:, :], rep, axis=1)
        v = (lambda x, n, axis: torch.repeat_interleave(x, n, dim=axis))(v_cache[:, :, Sk - W:, :], rep, axis=1)
        scores = torch.einsum("bhqd,bhkd->bhqk", q, k) * (Dh ** -0.5)
        p = _softmax(scores, axis=-1)
        o = torch.einsum("bhqk,bhkd->bhqd", p, v)
        return (lambda x, *d: x.permute(*d))(o, 0, 2, 1, 3).reshape(B, Sq, Hq * Dh) @ wo

    def _B_ref(x, w_gate, w_up, w_down):
        g = _silu(x @ w_gate)
        u = x @ w_up
        return (g * u) @ w_down

    x = A_x
    xn = _layernorm(x, axis=-1)
    s = _A_ref(xn, A_k_cache, A_v_cache, A_wq, A_wo)
    g = _silu(_B_ref(xn, B_w_gate, B_w_up, B_w_down))
    return x + s * g
```

```python
NAME = "recurrent_scan__sliding_block_cached__swiglu_ffn__decode"
HEADER = open("cdna_kernels/%s.s.ref" % NAME).read().split("; Override launch")[0]

class Asm:
    def __init__(self):
        self.lines = []
    def __call__(self, s="", *a):
        if a: s = s % a
        for l in s.split("\n"):
            l = l.strip()
            if not l: continue
            if l.endswith(":") or l.startswith("."):
                self.lines.append(l)
            else:
                self.lines.append("    " + l)
    def text(self):
        return "\n".join(self.lines) + "\n"

def wrap(body, grid, block, lds, nvgpr, nsgpr, accum=None, name=NAME + "_kernel", align=8):
    if accum is None: accum = min(256, (nvgpr + 3) // 4 * 4)
    s = HEADER
    s += "; @launch grid=(%d,1,1) block=(%d,1,1) lds=%d\n" % (grid, block, lds)
    s += '.amdgcn_target "amdgcn-amd-amdhsa--gfx950"\n.text\n.globl %s\n%s.p2align 8\n.type %s,@function\n%s:\n' % (name, '.p2align %d\n' % align if align > 8 else '', name, name)
    s += body
    s += '.section .rodata,"a"\n.p2align 6\n.amdhsa_kernel %s\n' % name
    s += "  .amdhsa_next_free_vgpr %d\n  .amdhsa_next_free_sgpr %d\n  .amdhsa_accum_offset %d\n" % (nvgpr, nsgpr, accum)
    s += "  .amdhsa_group_segment_fixed_size 0\n  .amdhsa_kernarg_size 96\n  .amdhsa_user_sgpr_count 2\n  .amdhsa_user_sgpr_kernarg_segment_ptr 1\n  .amdhsa_system_sgpr_workgroup_id_x 1\n"
    s += "  .amdhsa_float_denorm_mode_32 3\n"
    s += ".end_amdhsa_kernel\n"
    return s

import re
_REG = re.compile(r"\b([vas])(\d+)\b|\b([vas])\[(\d+):(\d+)\]|\b(vcc|exec|m0)\b")
def _regs(op):
    out = []
    for m in _REG.finditer(op):
        if m.group(1): out.append((m.group(1), int(m.group(2))))
        elif m.group(3): out += [(m.group(3), i) for i in range(int(m.group(4)), int(m.group(5)) + 1)]
        else: out.append((m.group(6), 0))
    return out
TRANS = ("v_exp_", "v_log_", "v_rcp_", "v_rsq_", "v_sqrt_", "v_sin_", "v_cos_")
class Ins:
    def __init__(self, line):
        self.line = line
        t = line.split(";")[0].strip()
        self.is_ins = bool(t) and not t.endswith(":") and not t.startswith(".")
        self.mn = t.split()[0] if self.is_ins else ""
        rest = t[len(self.mn):].strip()
        ops = []; cur = ""; depth = 0
        for ch in rest:
            if ch == "[": depth += 1
            if ch == "]": depth -= 1
            if ch == "," and depth == 0: ops.append(cur.strip()); cur = ""
            else: cur += ch
        if cur.strip(): ops.append(cur.strip())
        self.mods = ""
        if ops:
            p = ops[-1].split(None, 1)
            if len(p) == 2 and not p[0].startswith("hwreg"):
                ops[-1] = p[0]; self.mods = p[1]
        self.ops = ops
        mn = self.mn
        self.mfma = mn.startswith("v_mfma")
        self.valu = mn.startswith("v_") and not self.mfma
        self.trans = mn.startswith(TRANS)
        self.dpp = "_dpp" in mn
        self.sdwa = "_sdwa" in mn
        self.perml = mn.startswith("v_permlane")
        self.rdlane = mn.startswith(("v_readlane", "v_readfirstlane"))
        self.vmem = mn.startswith(("global_", "buffer_", "flat_"))
        self.ds = mn.startswith("ds_")
        self.salu = mn.startswith("s_")
        w = []; r = []
        R = [_regs(o) for o in ops]
        if self.valu or self.mfma:
            if self.perml: w = R[0] + R[1]; r = R[0] + R[1]
            elif mn.startswith(("v_add_co", "v_sub_co", "v_addc_co", "v_subb_co")): w = R[0] + R[1]; r = sum(R[2:], [])
            elif mn.startswith("v_nop"): pass
            else:
                w = R[0]; r = sum(R[1:], [])
                if mn.startswith(("v_fmac", "v_dot2c", "v_writelane", "v_pk_fmac")) or self.dpp or self.sdwa: r = r + R[0]
            if mn.startswith("v_cmpx"): w = w + [("exec", 0)]
        elif self.vmem:
            if "load" in mn and "lds" not in mn and "lds" not in self.mods: w = R[0]; r = sum(R[1:], [])
            elif "atomic" in mn and "sc0" in self.mods and mn.startswith("global"): w = R[0]; r = sum(R[1:], [])
            else: r = sum(R, [])
        elif self.ds:
            if mn.startswith(("ds_read", "ds_bpermute", "ds_permute", "ds_swizzle")) or "rtn" in mn: w = R[0]; r = sum(R[1:], [])
            else: r = sum(R, [])
        elif self.salu:
            if mn.startswith(("s_cmp", "s_cbranch", "s_branch", "s_waitcnt", "s_nop", "s_barrier", "s_endpgm", "s_setprio", "s_sleep", "s_bitcmp")): r = sum(R, [])
            else:
                w = R[0] if R else []; r = sum(R[1:], [])
        self.w = set(w); self.r = set(r)
        self.srcc = set(R[3]) if self.mfma and len(R) > 3 else set()
        self.srcab = set(R[1] + R[2]) if self.mfma else set()
        self.stdata = set()
        if self.vmem and "store" in mn and mn.endswith(("x3", "x4")):
            self.stdata = set(R[1]) if mn.startswith("global") else set(R[0])
        self.states = 1
        if mn == "s_nop": self.states = int(ops[0], 0) + 1
        self.passes = 0
        if self.mfma:
            self.passes = 8 if "32x32" in mn else 4
def need(p, c):
    n = 0
    def vg(s): return {x for x in s if x[0] in "va" and x[0] != "vcc"}
    def sg(s): return {x for x in s if x[0] in ("s", "vcc")}
    pv = {x for x in p.w if x[0] in ("v", "a")}; ps = {x for x in p.w if x[0] in ("s", "vcc")}
    if p.valu:
        if pv & c.r:
            if c.dpp or c.perml: n = max(n, 2)
            if c.rdlane: n = max(n, 1)
            if c.mfma: n = max(n, 2)
            if p.trans and not c.trans: n = max(n, 1)
            if (p.sdwa or "op_sel" in p.mods) and c.valu: n = max(n, 1)
            if p.mn.startswith("v_dot") and not (c.mn == p.mn): n = max(n, 3)
        if ps & c.r:
            if c.valu or c.mfma: n = max(n, 2)
            if c.mn.startswith(("v_readlane", "v_writelane")): n = max(n, 4)
            if c.vmem: n = max(n, 5)
            if c.salu: n = max(n, 1)
        if ("vcc", 0) in p.w and c.mn.startswith("s_cbranch_vcc"): n = max(n, 5)
        if ("exec", 0) in p.w:
            if c.dpp: n = max(n, 5)
            if c.rdlane or c.perml or c.mfma: n = max(n, 4)
            if c.valu and ("exec", 0) in c.r: n = max(n, 2)
    if p.mfma:
        k = {4: (8, 6, 3), 8: (12, 10, 7)}[p.passes]
        if c.mfma:
            if pv & c.srcab: n = max(n, k[0])
            if pv & c.srcc and not (c.srcc == pv and c.mn == p.mn): n = max(n, k[1])
            if pv & c.w and not (c.srcc == pv and c.mn == p.mn): n = max(n, k[1])
        else:
            if pv & (c.r | c.w): n = max(n, k[0])
            if c.valu and p.srcc & c.w: n = max(n, k[2])
    if p.stdata and p.stdata & c.w: n = max(n, 2)
    if p.salu and ("m0", 0) in p.w and (c.vmem or c.ds): n = max(n, 1)
    return n
def fix_hazards(text, verbose=False):
    lines = text.split("\n")
    ins = []; labels = {}; pend = []
    for n, line in enumerate(lines):
        c = Ins(line)
        t = line.split(";")[0].strip()
        if t.endswith(":"): pend.append(t[:-1]); continue
        if not c.is_ins: continue
        c.n = n; c.pad = 0; c.idx = len(ins)
        for l in pend: labels[l] = c.idx
        pend = []
        ins.append(c)
    preds = [[] for _ in ins]
    for c in ins:
        if c.idx + 1 < len(ins) and c.mn not in ("s_branch", "s_endpgm", "s_setpc_b64"): preds[c.idx + 1].append(c.idx)
        if c.mn.startswith(("s_branch", "s_cbranch")) and c.ops[0] in labels: preds[labels[c.ops[0]]].append(c.idx)
    added = 0
    for c in ins:
        best = {}
        stack = [(p, 0) for p in preds[c.idx]]
        pad = 0
        while stack:
            p, dist = stack.pop()
            if dist >= 20 or best.get(p, 99) <= dist: continue
            best[p] = dist
            k = need(ins[p], c) - dist
            if k > pad: pad = k
            d2 = dist + ins[p].states + ins[p].pad
            for q in preds[p]: stack.append((q, d2))
        c.pad = pad; added += pad
    out = list(lines)
    for c in reversed(ins):
        if c.pad: out.insert(c.n, "    s_nop %d" % (c.pad - 1))
    if verbose: print("hazard pads: %d states" % added)
    return "\n".join(out)
```

```python
import sys
from asmlib import *

QA, QB, FA, FB, OP, SP, HP = 0x10000, 0x20000, 0x40000, 0x60000, 0x80000, 0x100000, 0x140000
STAMP = 0x10000000
LOG2E = 0x3fb8aa3b
SCALE = 0x3db504f3
EPS = 0x3727c5ac
DPPM = "row_mask:0xf bank_mask:0xf"
STN = "start,karg,x,ln,q,qpub,qg1,qg,fpub,k,b3,p,v,opub,og1,og,spub,ypub,yg,sg,end".split(",")

def gen(fn, stamps=False, nt="nt", R=4, fper=2, WF=8, wa=lambda k: 5, mk=2, b3pos=9, gno=4, atries=4, maxspin=100000,
        force_slow=False, probe=None, ticks=True, align=12, mkt=None, nh=16, hdelay=0, fretry=1, qr=(), ep='', wb=None, hpos='post', warmh=False, kw5=0, kwo=0, od=0, kw6=0, kws=0, kw6w=0, hfree=4, hnop=4, hatom=True, fgw=True, kw5w=0, dlate=0, rot=3, trig='mk'):
    if probe is not None: stamps = True
    a = Asm()
    def vr(r, n): return "v[%d:%d]" % (r, r + n - 1)
    def sp(r): return "s[%d:%d]" % (r, r + 1)
    class RA:
        def __init__(s, n): s.n = n; s.hi = n
        def __call__(s, k=1):
            if k >= 2 and s.n % 2: s.n += 1
            r = s.n; s.n += k; s.hi = max(s.hi, s.n); return r
    sX, sK, sV, sWQ, sWO, sG, sU, sD, sOUT, sWS = 4, 6, 8, 10, 12, 16, 18, 20, 22, 26
    sW, sg, sj = 3, 28, 29
    sT, sTb, sSpin, sXC, sTA, sFlag, sCQ, sNB = 33, 36, 41, 42, 43, 44, 45, 46
    st0 = 54
    def stamp(name):
        if stamps:
            k = STN.index(name); a("s_memrealtime s[%d:%d]" % (st0 + 2*k, st0 + 2*k + 1))
    NP0 = st0 + 2*len(STN)
    assert NP0 + 5 <= 102
    FULL = "s_mov_b64 exec, -1"
    L_QB, L_ML, L_FL, L_O, L_S = 0, 1024, 1280, 2048, 10240
    L_Y = L_S + 2048
    HOP = 'global_atomic_swap v%d, v%d, %s' if hatom else 'global_store_dword v%d, v%d, %s sc1'
    V = RA(1)
    vG = V(); t0 = V(8); t1, t2, t3, t4, t5, t6, t7 = [t0 + i for i in range(1, 8)]
    u0 = V(8); w0 = V(8); M = V(4); vr8, vc8, vc4, vFF, vl16 = V(), V(), V(), V(), V()
    base_regs = V.n
    tail = []

    class Stream:
        def __init__(s): s.issued = []
        def vm(s, name, text): a(text); s.issued.append(name)
        def wait(s, name):
            idx = max(i for i, x in enumerate(s.issued) if x == name)
            a("s_waitcnt vmcnt(%d)" % (len(s.issued) - 1 - idx))
        def setseq(s, seq, win):
            s.seq = seq; s.names = [x[0] for x in seq]; s.pos = 0; s.landed = 0; s.win = win; s.N = len(seq)
        def issue(s):
            if s.pos < s.N: s.vm(*s.seq[s.pos]); s.pos += 1
        def land(s, name):
            idx = s.names.index(name)
            while s.landed <= idx:
                while s.pos <= s.landed: s.issue()
                k = s.landed
                while k < idx and (s.pos == s.N or s.pos - (k + 1) >= s.win(s.pos)): k += 1
                s.wait(s.names[k]); s.landed = k + 1
                while s.pos < s.N and s.pos - s.landed < s.win(s.pos): s.issue()
        def tick(s):
            if ticks: s.issue()

    def warm(n):
        for i in range(n): a("v_mov_b32 v%d, v%d\ns_nop 2" % (vc4, vc4))
    def unpack(dst, src): a("v_lshlrev_b32 v%d, 16, v%d\nv_and_b32 v%d, 0xffff0000, v%d" % (dst, src, dst+1, src))
    def rorred(op, regs, ks):
        for k in ks:
            for r in regs: a("%s_dpp v%d, v%d, v%d row_ror:%d %s" % (op, r, r, r, k, DPPM))
    def swapred(op, regs, tmps):
        for sw in ("v_permlane16_swap_b32", "v_permlane32_swap_b32"):
            for r, t in zip(regs, tmps): a("v_mov_b32 v%d, v%d" % (t, r))
            for r, t in zip(regs, tmps): a("%s v%d, v%d" % (sw, r, t))
            for r, t in zip(regs, tmps): a("%s v%d, v%d, v%d" % (op, r, r, t))
    def pkadd(d, x, y): a("v_pk_add_f32 %s, %s, %s" % (vr(d, 2), vr(x, 2), vr(y, 2)))
    def add4(d, x, y): pkadd(d, x, y); pkadd(d+2, x+2, y+2)
    def tred4(rs):
        for r in rs: a("v_permlane32_swap_b32 v%d, v%d\nv_permlane32_swap_b32 v%d, v%d" % (r, r+2, r+1, r+3))
        for r in rs: pkadd(r, r, r+2)
        for r in rs: a("v_permlane16_swap_b32 v%d, v%d" % (r, r+1))
        for r in rs: a("v_add_f32 v%d, v%d, v%d" % (r, r, r+1))
    def silu(rs, tmps):
        for r, t in zip(rs, tmps): a("v_mul_f32 v%d, 0x%x, v%d" % (t, LOG2E | 0x80000000, r))
        for r, t in zip(rs, tmps): a("v_exp_f32 v%d, v%d" % (t, t))
        for r, t in zip(rs, tmps): a("v_add_f32 v%d, 1.0, v%d" % (t, t))
        for r, t in zip(rs, tmps): a("v_rcp_f32 v%d, v%d" % (t, t))
        for r, t in zip(rs, tmps): a("v_mul_f32 v%d, v%d, v%d" % (r, r, t))
    def rbf(r, dst=None): a("v_cvt_pk_bf16_f32 v%d, v%d, v%d\nv_lshlrev_b32 v%d, 16, v%d" % (r, r, r, r if dst is None else dst, r))
    def masks():
        a("v_and_b32 v%d, 1, v0\nv_lshlrev_b32 v%d, 4, v%d\nv_mov_b32 v%d, 0xffff\nv_lshlrev_b32 v%d, v%d, v%d" % (t1, t1, t1, t2, t1, t1, t2))
        a("v_lshrrev_b32 v%d, 1, v%d" % (t2, vc8))
        cm = (48, 50, 30, 34)
        for q in range(4): a("v_cmp_eq_u32 %s, %d, v%d" % (sp(cm[q]), q, t2))
        for q in range(4): a("v_cndmask_b32 v%d, 0, v%d, %s" % (M+q, t1, sp(cm[q])))
        a("v_mov_b32 v%d, 0xffffff00" % vFF)
    def mktag(local):
        a("s_waitcnt lgkmcnt(0)")
        a("s_mul_i32 s%d, s%d, 0x0019660d\ns_add_u32 s%d, s%d, 0x3c6ef35f" % (sT, sT, sT, sT))
        for i in range(4): a("s_bfe_u32 s%d, s%d, 0x%x" % (sTb+i, sT, (8 << 16) | (8*i)))
        if local:
            a("s_getreg_b32 s%d, hwreg(HW_REG_XCC_ID, 0, 4)\ns_lshl1_add_u32 s%d, s%d, 32\ns_xor_b32 s%d, s%d, s%d" % (sXC, sXC, sXC, sTA, sTb, sXC))
    def tagify(r, s0=None):
        for i in range(4): a("v_and_or_b32 v%d, v%d, v%d, s%d" % (r+i, r+i, vFF, (s0 if (i == 0 and s0) else sTb+i)))
    def untag(rs, chk, s0=None):
        for r in rs:
            for i in range(4): a("v_xor_b32 v%d, s%d, v%d" % (r+i, (s0 if (i == 0 and s0) else sTb+i), r+i))
        regs = [r+i for r in rs for i in range(4)]
        a("v_or3_b32 v%d, v%d, v%d, v%d" % (chk, regs[0], regs[1], regs[2])); regs = regs[3:]
        while len(regs) >= 2:
            a("v_or3_b32 v%d, v%d, v%d, v%d" % (chk, chk, regs[0], regs[1])); regs = regs[2:]
        if regs: a("v_or_b32 v%d, v%d, v%d" % (chk, chk, regs[0]))
        a("v_cmp_ne_u32_sdwa vcc, v%d, 0 src0_sel:BYTE_0 src1_sel:DWORD" % chk)
    def poll(label, np_, check, reissue, pre=None):
        a("s_mov_b32 s%d, 0" % sSpin)
        a("%s_chk:" % label)
        check()
        a("s_and_b64 exec, exec, vcc\ns_cbranch_scc1 %s_re" % label)
        a("%s_ok:" % label)
        a(FULL)
        if stamps: a("s_mov_b32 s%d, s%d" % (NP0 + np_, sSpin))
        keep = a.lines; a.lines = []
        a("%s_re:" % label)
        a("s_add_u32 s%d, s%d, 1\ns_cmp_ge_u32 s%d, %d\ns_cbranch_scc1 %s_ok" % (sSpin, sSpin, sSpin, maxspin, label))
        if pre: pre()
        reissue()
        a("s_waitcnt vmcnt(0)\ns_branch %s_chk" % label)
        tail.extend(a.lines); a.lines = keep
    def loop_poll(label, np_, check, issue, first_issued=False, between=None):
        a("s_mov_b32 s%d, %d" % (sSpin, maxspin))
        if first_issued: a("s_branch %s_w" % label)
        a("%s:" % label)
        issue()
        a("%s_w:" % label)
        a("s_sub_u32 s%d, s%d, 1\ns_cselect_b64 s[34:35], 0, exec" % (sSpin, sSpin))
        if between: between()
        a("s_waitcnt vmcnt(0)")
        check()
        a("s_and_b64 exec, s[34:35], vcc\ns_cbranch_scc1 %s" % label)
        a(FULL)
        if stamps: a("s_sub_u32 s%d, %d, s%d" % (NP0 + np_, maxspin - 1, sSpin))
    def ab_switch(label, pubregs, pubaddr, publo, pubhi, gaddr, delta):
        a("s_cmp_lt_u32 s%d, %d\ns_cbranch_scc1 %s_same" % (sSpin, atries, label))
        a("s_cmp_lg_u32 s%d, %d\ns_cbranch_scc1 %s_tog" % (sSpin, atries, label))
        a("s_mov_b64 s[30:31], exec\ns_mov_b32 exec_lo, 0x%x\ns_mov_b32 exec_hi, 0x%x\ns_mov_b32 s%d, 1" % (publo, pubhi, sFlag))
        a("v_and_or_b32 v%d, v%d, v%d, s%d\nv_xor_b32 v%d, 0x%x, v%d" % (pubregs, pubregs, vFF, sTb, pubaddr, delta, pubaddr))
        a("global_store_dwordx4 v%d, %s, %s sc1\ns_mov_b64 exec, s[30:31]" % (pubaddr, vr(pubregs, 4), sp(sWS)))
        a("%s_tog:" % label)
        a("s_xor_b32 s%d, s%d, s%d\nv_xor_b32 v%d, 0x%x, v%d" % (sTA, sTA, sXC, gaddr, delta, gaddr))
        a("%s_same:" % label)
    def layernorm(X, srcs, S):
        n = len(srcs)
        a("v_readfirstlane_b32 s30, v%d" % X)
        for i in range(4): unpack(u0+2*i, X+i)
        a("s_lshl_b32 s30, s30, 16\ns_mov_b32 s31, s30")
        for i in range(4): a("v_pk_add_f32 %s, %s, s[30:31] neg_lo:[0,1] neg_hi:[0,1]" % (vr(u0+2*i, 2), vr(u0+2*i, 2)))
        pkadd(t0, u0, u0+2); a("v_pk_mul_f32 %s, %s, %s" % (vr(t2, 2), vr(u0, 2), vr(u0, 2)))
        pkadd(t0, t0, u0+4); a("v_pk_fma_f32 %s, %s, %s, %s" % (vr(t2, 2), vr(u0+2, 2), vr(u0+2, 2), vr(t2, 2)))
        pkadd(t0, t0, u0+6); a("v_pk_fma_f32 %s, %s, %s, %s" % (vr(t2, 2), vr(u0+4, 2), vr(u0+4, 2), vr(t2, 2)))
        a("v_pk_fma_f32 %s, %s, %s, %s\nv_add_f32 v%d, v%d, v%d" % (vr(t2, 2), vr(u0+6, 2), vr(u0+6, 2), vr(t2, 2), t0, t0, t1))
        a("v_add_f32 v%d, v%d, v%d" % (t1, t2, t3))
        fill = []
        for i, s_ in enumerate(srcs): fill += ["v_lshlrev_b32 v%d, 16, v%d" % (u0+2*i, s_), "v_and_b32 v%d, 0xffff0000, v%d" % (u0+2*i+1, s_)]
        for k in (8, 4, 2, 1):
            if fill: a(fill.pop(0))
            rorred("v_add_f32", [t0, t1], [k])
        swapred("v_add_f32", [t0, t1], [t2, t3])
        a("v_mul_f32 v%d, 0x3b000000, v%d\nv_mul_f32 v%d, 0x3b000000, v%d" % (t0, t0, t1, t1))
        a("v_fma_f32 v%d, -v%d, v%d, v%d  ; var\nv_add_f32 v%d, s30, v%d  ; mean" % (t1, t0, t0, t1, t0, t0))
        a("v_max_f32 v%d, 0, v%d" % (t1, t1))
        a("v_cvt_pk_bf16_f32 v%d, v%d, v%d" % (t0, t0, t1))
        a("v_and_b32 v%d, 0xffff0000, v%d\nv_lshlrev_b32 v%d, 16, v%d" % (t2, t0, t0, t0))
        a("v_add_f32 v%d, 0x%x, v%d" % (t2, EPS, t2))
        for i in range(n): a("v_pk_add_f32 %s, %s, %s op_sel_hi:[1,0] neg_lo:[0,1] neg_hi:[0,1]" % (vr(u0+2*i, 2), vr(u0+2*i, 2), vr(t0, 2)))
        rbf(t2); a("v_sqrt_f32 v%d, v%d" % (t2, t2))
        for i in range(n): a("v_cvt_pk_bf16_f32 v%d, v%d, v%d" % (t4+i, u0+2*i, u0+2*i+1))
        rbf(t2); a("v_rcp_f32 v%d, v%d" % (t2, t2))
        for i in range(n): unpack(u0+2*i, t4+i)
        for i in range(n): a("v_pk_mul_f32 %s, %s, %s op_sel_hi:[1,0]" % (vr(u0+2*i, 2), vr(u0+2*i, 2), vr(t2, 2)))
        for i in range(2*n): a("v_cvt_pk_bf16_f32 v%d, v%d, v%d" % (u0+i, u0+i, u0+i))
    def qp(c): return "quad_perm:[%d,%d,%d,%d] %s" % (c, c, c, c, DPPM)
    def mfma32(d, A, B, first): a("v_mfma_f32_16x16x32_bf16 %s, %s, %s, %s" % (vr(d, 4), vr(A, 4), vr(B, 4), "0" if first else vr(d, 4)))

    if stamps:
        a("s_memrealtime s[%d:%d]" % (st0, st0+1))
    a("s_load_dwordx16 s[4:19], s[0:1], 0\ns_load_dwordx8 s[20:27], s[0:1], 64")
    a("s_cmp_ge_u32 s2, 256\ns_cbranch_scc1 L_end")
    a("v_lshrrev_b32 v%d, 6, v0\nv_and_b32 v0, 63, v0" % t0)
    a("v_readfirstlane_b32 s%d, v%d" % (sW, t0))
    a("s_and_b32 s%d, s2, 7\ns_lshr_b32 s%d, s2, 3" % (sg, sj))
    a("v_lshrrev_b32 v%d, 4, v0\nv_lshrrev_b32 v%d, 3, v0\nv_and_b32 v%d, 7, v0\nv_and_b32 v%d, 3, v0\nv_lshlrev_b32 v%d, 4, v0" % (vG, vr8, vc8, vc4, vl16))
    if stamps:
        for k in range(1, len(STN)): a("s_mov_b32 s%d, 0" % (st0 + 2*k))
        for k in range(5): a("s_mov_b32 s%d, 0" % (NP0 + k))
    a("s_cmp_eq_u32 s%d, 0\ns_cbranch_scc1 L_Q0\ns_cmp_eq_u32 s%d, 1\ns_cbranch_scc1 L_F0" % (sW, sW))

    VA = RA(base_regs); SA = Stream()
    ak0, ak1, av0, av1, ao0, ao1, ago0, ago1, apo, aps, lqr, lml, low, lor, lsw, ahs = [VA() for _ in range(16)]
    Ma = VA(2); S0 = VA(4); KK = VA(32); VV = VA(32); WO = VA(16); QF = VA(4); acc = VA(8); OGR = VA(4)
    assert KK == S0 + 4
    PA = KK; OG = KK + 16; AO = KK
    a("s_sub_u32 s%d, s%d, 2" % (sW, sW))
    a("s_getpc_b64 s[48:49]\ns_and_b32 s48, s48, 0xffffff00\ns_lshl2_add_u32 s47, s%d, s%d\ns_lshl_b32 s31, s47, 7\ns_cmp_lt_u32 s31, L_end-%s_kernel-256\ns_cbranch_scc0 L_nopf" % (sj, sW, NAME))
    a("v_mov_b32 v%d, s31\ns_mov_b64 exec, 1\nglobal_load_dword v%d, v%d, s[48:49]\n%s" % (t5, OGR, t5, FULL))
    a("L_nopf:")
    if rot == 'lin':
        a("s_lshl_b32 s30, s%d, 24\ns_lshl_b32 s31, s47, 12\ns_add_u32 s30, s30, s31\ns_add_u32 s34, s30, %d\ns_add_u32 s35, s34, 0x80000" % (sg, 61440*256))
    else:
        a("s_lshl_b32 s30, s%d, 24\ns_lshl_b32 s31, s%d, 15\ns_add_u32 s30, s30, s31\ns_add_u32 s30, s30, %d" % (sg, sj, 61440*256))
        if rot == 1: a("s_add_u32 s31, s%d, s%d\ns_add_u32 s31, s31, s%d" % (sj, sg, sW))
        if rot == 3: a("s_add_u32 s31, s%d, s%d" % (sg, sW))
        if rot == 4: a("s_lshl2_add_u32 s31, s%d, s%d" % (sg, sW))
        a("s_and_b32 s31, s31, 7\ns_lshl_b32 s31, s31, 12\ns_add_u32 s34, s31, s30\ns_xor_b32 s31, s31, 0x4000\ns_add_u32 s35, s31, s30")
    a("v_bfe_u32 v%d, v0, 2, 2\nv_lshlrev_b32 v%d, 4, v%d\nv_lshl_add_u32 v%d, v%d, 6, v%d\nv_lshl_add_u32 v%d, v%d, 8, v%d" % (t4, t7, vc4, lqr, vG, t7, lqr, t4, lqr))
    a("v_add_u32 v%d, s34, v%d\nv_add_u32 v%d, s35, v%d" % (ak0, lqr, ak1, lqr))
    a("v_add_u32 v%d, s34, v%d\nv_add_u32 v%d, s35, v%d" % (av0, vl16, av1, vl16))
    seq = []
    for i in range(8): seq.append(("k%d" % i, "global_load_dwordx4 %s, v%d, %s offset:%d %s" % (vr(KK+4*i, 4), (ak0, ak1)[i >> 2], sp(sK), (i & 3)*1024, nt)))
    for i in range(8): seq.append(("v%d" % i, "global_load_dwordx4 %s, v%d, %s offset:%d %s" % (vr(VV+4*i, 4), (av0, av1)[i >> 2], sp(sV), (i & 3)*1024, nt)))
    for t in range(4): seq.append(("o%d" % t, "global_load_dwordx4 %s, v%d, %s offset:%d %s" % (vr(WO+4*t, 4), (ao0, ao1)[t >> 1], sp(sWO), ((t & 1) - 1)*4096, nt)))
    SA.setseq(seq, wa)
    a("s_waitcnt lgkmcnt(0)")
    a("s_load_dword s%d, %s, 0" % (sT, sp(sWS)))
    R0 = R - len(qr)
    for r in range(R0):
        a("s_barrier"); SA.issue()
    a("s_branch L_A1")

    VF = RA(base_regs); SF = Stream()
    af, ad, apf, agf, apy, ags, XF, XO = [VF() for _ in range(8)]
    XX = VF(4); GU = VF(64); DD = VF(32); AF = VF(8); accf = VF(8)
    FG = GU; YG = GU + 8
    a("L_F0:")
    a("s_cmp_gt_u32 s%d, %d\ns_subb_u32 s30, s%d, 0\ns_cmp_eq_u32 s%d, %d\ns_cselect_b32 s30, 7, s30\ns_lshr_b32 s31, s%d, 3\ns_lshl2_add_u32 s47, s30, s31  ; cb" % (sg, gno, sg, sg, gno, sj))
    a("s_and_b32 s40, s%d, 7\ns_lshl_b32 s30, s40, 6" % sj)
    a("v_lshl_add_u32 v%d, v%d, 1, s30\nv_lshl_add_u32 v%d, v%d, 4, v%d\nv_lshlrev_b32 v%d, 1, v%d" % (t4, vr8, t1, vc4, t4, t1, t1))
    a("s_lshl_b32 s31, s47, 7\nv_lshl_add_u32 v%d, v%d, 4, s31\ns_movk_i32 s30, 3584\nv_mad_u32_u24 v%d, v%d, s30, v%d\ns_mov_b32 s32, %d" % (af, vc8, af, t4, af, 16*3584))
    a("s_lshl3_add_u32 s30, s47, s40\ns_lshl_b32 s30, s30, 9\ns_add_u32 s34, s30, %d\nv_lshl_add_u32 v%d, v0, 7, s34" % (FA, t2))
    seq = []
    for t in range(8):
        for b, base in enumerate((sG, sU)):
            pre = "v_add_u32 v%d, s32, v%d\n" % (af, af) if (b == 0 and t and t % 2 == 0) else ""
            seq.append(("f%d" % (2*t+b), pre + "global_load_dwordx4 %s, v%d, %s offset:%d %s" % (vr(GU+8*t+4*b, 4), af, sp(base), (t & 1)*3584, nt)))
    for t in range(8):
        pre = "v_add_u32 v%d, 0x2000, v%d\n" % (ad, ad) if (t and t % 2 == 0) else ""
        seq.append(("d%d" % t, pre + "global_load_dwordx4 %s, v%d, %s offset:%d %s" % (vr(DD+4*t, 4), ad, sp(sD), ((t & 1) - 1)*4096, nt)))
    dseq = seq[24-dlate:]; seq = seq[:24-dlate]
    SF.setseq(seq, lambda k: WF)
    a("s_waitcnt lgkmcnt(0)")
    a("s_load_dword s%d, %s, 0" % (sT, sp(sWS)))
    a("s_cmp_eq_u32 s%d, %d\ns_cbranch_scc1 L_F0n" % (sg, gno))
    SF.vm("x", "global_load_dwordx4 %s, v%d, %s" % (vr(XX, 4), vl16, sp(sX)))
    SF.vm("x", "global_load_dword v%d, v%d, %s" % (XF, t1, sp(sX)))
    for r in range(R0):
        a("s_barrier")
        for k in range(fper): SF.issue()
    a("s_mov_b64 exec, 15")
    SF.vm("wm", "global_load_dword v%d, v%d, %s nt" % (DD+31, t2, sp(sWS)))
    a(FULL)
    a("s_branch L_F1")
    a("L_F0n:")
    for r in range(R0): a("s_barrier")
    a("s_branch L_F1")

    VQ = RA(base_regs); SQ = Stream()
    aq, apq, agq, amk = VQ(), VQ(), VQ(), VQ()
    XX2 = VQ(4); XQ = VQ(2); WQ = VQ(64); AQ = VQ(8); accq = VQ(4); QG = VQ(32)
    a("L_Q0:")
    a("s_lshr_b32 s30, s%d, 3\ns_lshl_b32 s30, s30, 7" % sj)
    a("v_lshl_add_u32 v%d, v%d, 2, s30\nv_lshl_add_u32 v%d, v%d, 5, v%d\nv_lshlrev_b32 v%d, 1, v%d" % (t4, vr8, t1, vc4, t4, t1, t1))
    a("s_and_b32 s32, s%d, 7\ns_lshl3_add_u32 s31, s%d, s32\ns_lshl_b32 s31, s31, 7" % (sj, sg))
    a("v_lshl_add_u32 v%d, v%d, 4, s31\nv_lshl_add_u32 v%d, v%d, 13, v%d" % (aq, vc8, aq, t4, aq))
    a("s_movk_i32 s34, 0x2000\ns_mov_b32 s35, %d" % (29*8192))
    a("s_lshl_b32 s47, s%d, 5\ns_add_u32 s47, s47, s%d  ; g*32+j\ns_lshl_b32 s30, s47, 8\ns_add_u32 s40, s30, %d\nv_lshl_add_u32 v%d, v0, 7, s40" % (sg, sj, QA, t2))
    a("s_lshl_b32 s30, s47, 11\ns_add_u32 s30, s30, %d\nv_lshl_add_u32 v%d, v0, 7, s30" % (OP, amk))
    a("s_waitcnt lgkmcnt(0)")
    stamp("karg")
    SQ.vm("x", "global_load_dwordx4 %s, v%d, %s" % (vr(XX2, 4), vl16, sp(sX)))
    SQ.vm("x", "global_load_dwordx2 %s, v%d, %s" % (vr(XQ, 2), t1, sp(sX)))
    for t in range(16):
        if t: a("v_add_u32 v%d, s%d, v%d" % (aq, 35 if t % 4 == 0 else 34, aq))
        SQ.vm("q%d" % t, "global_load_dwordx4 %s, v%d, %s %s" % (vr(WQ+4*t, 4), aq, sp(sWQ), nt))
        if t == 7:
            a("s_mov_b64 exec, 3")
            SQ.vm("wm", "global_load_dword v%d, v%d, %s nt" % (QG, t2, sp(sWS)))
            a(FULL)
    a("s_load_dword s%d, %s, 0" % (sT, sp(sWS)))
    def marker():
        a("s_mov_b64 exec, 0xffff")
        SQ.vm("mk", "global_load_dword v%d, v%d, %s nt" % (amk, amk, sp(sWS)))
        a(FULL)
    for r in range(R0):
        a("s_barrier")
        if r == mk and mkt is None: marker()
    masks()
    if mk >= R0 and mkt is None: marker()
    a("v_and_b32 v%d, 1, v%d\nv_lshl_add_u32 v%d, v%d, 1, v%d\nv_lshl_add_u32 v%d, v%d, 4, s40" % (t1, vG, t1, vc8, t1, apq, t1))
    a("s_lshl_b32 s30, s%d, 13\ns_add_u32 s30, s30, %d\nv_add_u32 v%d, s30, v%d\ns_mov_b32 s%d, 0" % (sg, QA + 4096, agq, vl16, sFlag))
    SQ.wait("x")
    stamp("x")
    layernorm(XX2, [XQ, XQ+1], SQ)
    stamp("ln")
    for t in range(16):
        for q in range(4): a("v_and_b32_dpp v%d, v%d, v%d %s" % (AQ+4*(t & 1)+q, u0+(t & 3), M+q, qp(t >> 2)))
        if t == 14: mktag(True)
        SQ.wait("q%d" % t)
        if t in qr: a("s_barrier")
        mfma32(accq, AQ+4*(t & 1), WQ+4*t, t == 0)
        if t == mkt: marker()
    stamp("q")
    a("v_mov_b64 %s, %s\nv_mov_b64 %s, %s" % (vr(t0, 2), vr(accq, 2), vr(t2, 2), vr(accq+2, 2)))
    for i in range(4): a("v_permlane32_swap_b32 v%d, v%d" % (accq+i, t0+i))
    for i in range(4): a("v_add_f32_dpp v%d, v%d, v%d row_ror:8 %s" % (accq+i, t0+i, accq+i, DPPM))
    if force_slow: a("s_xor_b32 s30, s%d, 0x40" % sTA)
    tagify(accq, 30 if force_slow else sTA)
    a("s_mov_b64 exec, 0x00ff00ff")
    SQ.vm("st", "global_store_dwordx4 v%d, %s, %s" % (apq, vr(accq, 4), sp(sWS)))
    a(FULL)
    stamp("qpub")
    for r in qr:
        if r >= 16: a("s_barrier")
    if mkt == 16:
        marker()
        if stamps: SQ.wait("st"); stamp("x")
    if mkt == 17:
        SQ.wait("st"); stamp("x"); marker()
    SQ.wait(trig)
    stamp("ln")
    def gq():
        for i in range(8): a("global_load_dwordx4 %s, v%d, %s offset:%d sc1" % (vr(QG+4*i, 4), agq, sp(sWS), i*1024 - 4096))
    gq()
    if mkt == 18: marker()
    a("v_lshlrev_b32 v%d, 3, v0" % t6)
    a("s_waitcnt vmcnt(%d)" % (1 if mkt == 18 else 0))
    stamp("qg1")
    poll("L_q", 0, lambda: untag([QG+4*i for i in range(8)], t0, sTA), gq, lambda: ab_switch("L_q", accq, apq, 0x00ff00ff, 0, agq, QA ^ QB))
    for hh in range(2):
        add4(QG+4*hh, QG+4*hh, QG+8+4*hh); add4(QG+16+4*hh, QG+16+4*hh, QG+24+4*hh)
    for hh in range(2): add4(QG+4*hh, QG+4*hh, QG+16+4*hh)
    for i in range(4): a("v_cvt_pk_bf16_f32 v%d, v%d, v%d" % (t0+i, QG+2*i, QG+2*i+1))
    a("v_mov_b32 v%d, s%d" % (t4, sFlag))
    a("ds_write2st64_b64 v%d, %s, %s offset0:%d offset1:%d" % (t6, vr(t0, 2), vr(t2, 2), L_QB // 512, L_QB // 512 + 1))
    a("ds_write_b32 v%d, v%d offset:%d" % (t6, t4, L_FL))
    a("s_waitcnt lgkmcnt(0)")
    stamp("qg")
    a("s_barrier")
    a("s_branch L_done" if stamps else "s_endpgm")

    a("L_A1:")
    masks()
    a("v_or_b32 v%d, v%d, v%d\nv_or_b32 v%d, v%d, v%d" % (Ma, M, M+2, Ma+1, M+1, M+3))
    a("s_mov_b32 s48, 0xaaaaaaaa\ns_mov_b32 s49, s48\ns_mov_b32 s50, 0xcccccccc\ns_mov_b32 s51, s50")
    a("v_and_b32 v%d, 15, v0\nv_lshlrev_b32 v%d, 4, v%d  ; n, n*16" % (t6, t5, t6))
    a("s_lshr_b32 s14, s%d, 2\ns_lshl3_add_u32 s15, s%d, s14  ; g*8 + (j>>2)\ns_lshl2_add_u32 s30, s15, s%d\ns_lshl_b32 s30, s30, 14" % (sj, sg, sW))
    a("s_and_b32 s32, s%d, 3\ns_lshl_b32 s31, s32, 8\ns_add_u32 s30, s30, s31\ns_add_u32 s30, s30, 4096" % sj)
    a("v_lshl_add_u32 v%d, v%d, 10, v%d\nv_add_u32 v%d, s30, v%d\nv_add_u32 v%d, 0x2000, v%d" % (ao0, vG, t5, ao0, ao0, ao1, ao0))
    a("s_lshl_b32 s32, s32, 16\ns_lshl_b32 s15, s15, 10\ns_add_u32 s15, s15, s32\ns_add_u32 s15, s15, %d\nv_add_u32 v%d, s15, v%d" % (SP, aps, vl16))
    a("v_lshlrev_b32 v%d, 5, v%d" % (lml, t4))
    a("s_lshl_b32 s32, s%d, 11\nv_add_u32 v%d, s32, v%d" % (sW, low, vl16))
    a("v_and_b32 v%d, 1, v0\nv_lshrrev_b32 v%d, 1, v0\ns_lshl_b32 s32, s%d, 8\nv_lshl_add_u32 v%d, v%d, 4, s32\nv_lshl_add_u32 v%d, v%d, 10, v%d" % (t2, t3, sW, lor, t3, lor, t2, lor))
    a("s_lshl_b32 s32, s%d, 9\nv_add_u32 v%d, s32, v%d" % (sW, lsw, vl16))
    a("s_lshl_b32 s30, s%d, 16\ns_add_u32 s30, s30, %d\ns_lshl_b32 s31, s47, 9\ns_add_u32 s31, s31, s30\nv_add_u32 v%d, s31, v%d" % (sg, OP, apo, vl16))
    a("s_lshl2_add_u32 s31, s14, s%d\ns_lshl_b32 s31, s31, 6\ns_add_u32 s30, s30, s31" % sW)
    a("v_lshrrev_b32 v%d, 2, v0\nv_lshl_add_u32 v%d, v%d, 11, v%d\nv_add_u32 v%d, s30, v%d\nv_add_u32 v%d, 0x8000, v%d" % (t2, ago0, t2, t7, ago0, ago0, ago1, ago0))
    a("s_lshl_b32 s30, s%d, 7\ns_lshl2_add_u32 s30, s%d, s30\ns_add_u32 s30, s30, %d\nv_lshl_add_u32 v%d, v0, 12, s30\nv_lshlrev_b32 v%d, 3, v0" % (sj, sg, HP, ahs, vr8))
    a("s_cmp_eq_u32 s%d, 3\ns_cselect_b32 s46, 1, 0" % sW)
    mktag(False)
    a("v_mov_b32 v%d, s%d\nv_mov_b32 v%d, 0" % (OGR+3, sT, t7))
    for r in qr:
        a("s_barrier"); SA.issue()
    SA.land("k7")
    stamp("k")
    if b3pos > 7: SA.land(SA.names[b3pos])
    a("s_barrier")
    stamp("b3")
    a("ds_read_b128 %s, v%d offset:%d\nds_read_b32 v%d, v%d offset:%d" % (vr(QF, 4), lqr, L_QB, t7, t7, L_FL))
    SA.tick()
    a("s_waitcnt lgkmcnt(1)")
    for i in range(8): mfma32(S0+4*i, KK+4*i, QF, True)
    a("s_waitcnt lgkmcnt(0)\nv_readfirstlane_b32 s%d, v%d" % (sFlag, t7))
    for c in range(4):
        for i in range(8):
            if c == 0: a("v_mov_b32_dpp v%d, v%d %s" % (u0+i, S0+4*i, qp(0)))
            else: a("v_add_f32_dpp v%d, v%d, v%d %s" % (u0+i, S0+4*i+c, u0+i, qp(c)))
    SA.tick()
    for i in range(4): a("v_cndmask_b32 v%d, v%d, v%d, s[48:49]" % (u0+2*i, u0+2*i, u0+2*i+1))
    a("v_cndmask_b32 v%d, v%d, v%d, s[50:51]\nv_cndmask_b32 v%d, v%d, v%d, s[50:51]" % (u0, u0, u0+2, u0+1, u0+4, u0+6))
    a("v_cvt_pk_bf16_f32 v%d, v%d, v%d" % (t0, u0, u0+1)); unpack(u0, t0)
    a("v_mul_f32 v%d, 0x%x, v%d\nv_mul_f32 v%d, 0x%x, v%d" % (u0, SCALE, u0, u0+1, SCALE, u0+1))
    a("v_cvt_pk_bf16_f32 v%d, v%d, v%d" % (t0, u0, u0+1)); unpack(u0, t0)
    a("v_max_f32 v%d, v%d, v%d" % (t0, u0, u0+1))
    a("v_max_f32_dpp v%d, v%d, v%d quad_perm:[1,0,3,2] %s\nv_max_f32_dpp v%d, v%d, v%d quad_perm:[2,3,0,1] %s" % (t0, t0, t0, DPPM, t0, t0, t0, DPPM))
    swapred("v_max_f32", [t0], [t1])
    a("v_sub_f32 v%d, v%d, v%d\nv_sub_f32 v%d, v%d, v%d" % (u0, u0, t0, u0+1, u0+1, t0))
    a("v_mul_f32 v%d, 0x%x, v%d\nv_mul_f32 v%d, 0x%x, v%d\nv_mul_f32 v%d, 0x%x, v%d" % (u0, LOG2E, u0, u0+1, LOG2E, u0+1, t0, LOG2E, t0))
    a("v_exp_f32 v%d, v%d\nv_exp_f32 v%d, v%d" % (u0, u0, u0+1, u0+1))
    a("s_lshl_b32 s30, s%d, 3\nv_add_u32 v%d, s30, v%d" % (sW, t4, lml))
    a("v_add_f32 v%d, v%d, v%d" % (t1, u0, u0+1))
    a("v_add_f32_dpp v%d, v%d, v%d quad_perm:[1,0,3,2] %s\nv_add_f32_dpp v%d, v%d, v%d quad_perm:[2,3,0,1] %s" % (t1, t1, t1, DPPM, t1, t1, t1, DPPM))
    swapred("v_add_f32", [t1], [t2])
    a("ds_write_b64 v%d, %s offset:%d" % (t4, vr(t0, 2), L_ML))
    SA.tick()
    a("s_waitcnt lgkmcnt(0)\ns_barrier")
    a("ds_read_b128 %s, v%d offset:%d\nds_read_b128 %s, v%d offset:%d" % (vr(w0, 4), lml, L_ML, vr(w0+4, 4), lml, L_ML + 16))
    a("s_lshl_b32 s30, s%d, 2" % sW)
    a("s_waitcnt lgkmcnt(0)")
    a("v_max3_f32 v%d, v%d, v%d, v%d\nv_max_f32 v%d, v%d, v%d  ; M (log2 units)" % (t2, w0, w0+2, w0+4, t2, t2, w0+6))
    for i in range(4): a("v_sub_f32 v%d, v%d, v%d" % (w0+2*i, w0+2*i, t2))
    a("v_sub_f32 v%d, v%d, v%d" % (t0, t0, t2))
    for i in range(4): a("v_exp_f32 v%d, v%d" % (w0+2*i, w0+2*i))
    a("v_exp_f32 v%d, v%d" % (t0, t0))
    a("v_mul_f32 v%d, v%d, v%d" % (t1, w0, w0+1))
    for i in range(1, 4): a("v_fmac_f32 v%d, v%d, v%d" % (t1, w0+2*i, w0+2*i+1))
    a("v_rcp_f32 v%d, v%d\nv_log_f32 v%d, v%d" % (t4, t1, t1, t1))
    a("v_mul_f32 v%d, v%d, v%d\nv_add_f32 v%d, v%d, v%d  ; f, lse2" % (t0, t0, t4, t1, t1, t2))
    a("v_mul_f32 v%d, v%d, v%d\nv_mul_f32 v%d, v%d, v%d" % (u0, u0, t0, u0+1, u0+1, t0))
    a("v_readlane_b32 s40, v%d, s30" % t1)
    a("v_cvt_pk_bf16_f32 v%d, v%d, v%d\nv_cvt_pk_bf16_f32 v%d, v%d, v%d" % (u0, u0, u0, u0+1, u0+1, u0+1))
    a("v_mov_b32 v%d, s40" % (OGR+2))
    stamp("p")
    for i in range(8):
        for e in range(2): a("v_and_b32_dpp v%d, v%d, v%d %s" % (PA+2*i+e, u0+(i >> 2), Ma+e, qp(i & 3)))
        if i > 0:
            SA.land("v%d" % (i-1))
            for v in range(2): a("v_mfma_f32_16x16x16_bf16 %s, %s, %s, %s" % (vr(acc+4*v, 4), vr(PA+2*i-2, 2), vr(VV+4*i-4+2*v, 2), vr(acc+4*v, 4) if i > 1 else "0"))
    while SA.pos < SA.N: SA.issue()
    a("s_cmp_lg_u32 s%d, 0" % sFlag)
    SA.land("v7")
    for v in range(2): a("v_mfma_f32_16x16x16_bf16 %s, %s, %s, %s" % (vr(acc+4*v, 4), vr(PA+14, 2), vr(VV+28+2*v, 2), vr(acc+4*v, 4)))
    stamp("v")
    a("ds_write_b128 v%d, %s offset:%d\nds_write_b128 v%d, %s offset:%d" % (low, vr(acc, 4), L_O, low, vr(acc+4, 4), L_O + 1024))
    warm(kw5w)
    a("s_mov_b32 exec_hi, 0")
    a("s_waitcnt lgkmcnt(0)\ns_barrier")
    for ww in range(4): a("ds_read_b128 %s, v%d offset:%d" % (vr((u0, u0+4, w0, w0+4)[ww], 4), lor, L_O + 2048*ww))
    warm(kw5)
    for k, r in enumerate((u0+4, w0, w0+4)):
        a("s_waitcnt lgkmcnt(%d)" % (2-k)); add4(u0, u0, r)
    a("v_cvt_pk_bf16_f32 v%d, v%d, v%d\nv_cvt_pk_bf16_f32 v%d, v%d, v%d" % (OGR, u0, u0+1, OGR+1, u0+2, u0+3))
    a("s_cbranch_scc1 L_oslow")
    a("global_store_dwordx4 v%d, %s, %s" % (apo, vr(OGR, 4), sp(sWS)))
    a("L_opub:")
    tail.extend(["L_oslow:", "    global_store_dwordx4 v%d, %s, %s sc1" % (apo, vr(OGR, 4), sp(sWS)), "    s_branch L_opub"])
    stamp("opub")
    a(FULL)
    warm(od)
    def go():
        a("global_load_dwordx4 %s, v%d, %s sc1" % (vr(OG, 4), ago0, sp(sWS)))
        a("global_load_dwordx4 %s, v%d, %s sc1" % (vr(OG+4, 4), ago1, sp(sWS)))
    loop_poll("L_o", 1, lambda: a("v_cmp_ne_u32 vcc, s%d, v%d\nv_cmp_ne_u32 s[30:31], s%d, v%d\ns_or_b64 vcc, vcc, s[30:31]" % (sT, OG+3, sT, OG+7)), go, between=lambda: warm(kwo))
    stamp("og")
    if nh and hpos == 'og':
        a("s_cmp_eq_u32 s46, 0\ns_cbranch_scc1 L_nh\ns_mov_b64 exec, 255\n%s\n%s\nL_nh:" % (HOP % (ahs, OGR+3, sp(sWS)), FULL))
    a("v_max_f32 v%d, v%d, v%d" % (t0, OG+2, OG+6))
    unpack(u0, OG)
    rorred("v_max_f32", [t0], [4])
    unpack(u0+2, OG+1)
    rorred("v_max_f32", [t0], [8])
    a("v_mov_b32 v%d, v%d" % (t1, t0)); unpack(u0+4, OG+4)
    a("v_permlane16_swap_b32 v%d, v%d\nv_max_f32 v%d, v%d, v%d" % (t0, t1, t0, t0, t1))
    a("v_mov_b32 v%d, v%d" % (t1, t0)); unpack(u0+6, OG+5)
    a("v_permlane32_swap_b32 v%d, v%d\nv_max_f32 v%d, v%d, v%d" % (t0, t1, t0, t0, t1))
    a("v_sub_f32 v%d, v%d, v%d\nv_sub_f32 v%d, v%d, v%d" % (t2, OG+2, t0, t4, OG+6, t0))
    a("v_exp_f32 v%d, v%d\nv_exp_f32 v%d, v%d" % (t2, t2, t4, t4))
    a("v_pk_mul_f32 %s, %s, %s op_sel_hi:[1,0]\nv_pk_mul_f32 %s, %s, %s op_sel_hi:[1,0]" % (vr(u0, 2), vr(u0, 2), vr(t2, 2), vr(u0+2, 2), vr(u0+2, 2), vr(t2, 2)))
    a("v_add_f32 v%d, v%d, v%d\nv_add_f32 v%d, v%d, v%d" % (t0, t2, t4, t1, t2, t4))
    a("v_pk_fma_f32 %s, %s, %s, %s op_sel_hi:[1,0,1]\nv_pk_fma_f32 %s, %s, %s, %s op_sel_hi:[1,0,1]" % (vr(u0, 2), vr(u0+4, 2), vr(t4, 2), vr(u0, 2), vr(u0+2, 2), vr(u0+6, 2), vr(t4, 2), vr(u0+2, 2)))
    a("v_permlane32_swap_b32 v%d, v%d" % (t0, t1))
    a("v_add_f32 v%d, v%d, v%d\nv_add_f32 v%d, v%d, v%d" % (t2, t0, t1, t3, t0, t1))
    a("v_permlane32_swap_b32 v%d, v%d\nv_permlane32_swap_b32 v%d, v%d" % (u0, u0+2, u0+1, u0+3))
    pkadd(u0, u0, u0+2)
    a("v_permlane16_swap_b32 v%d, v%d\nv_add_f32 v%d, v%d, v%d" % (t2, t3, t2, t2, t3))
    a("v_permlane16_swap_b32 v%d, v%d\nv_add_f32 v%d, v%d, v%d" % (u0, u0+1, u0, u0, u0+1))
    rorred("v_add_f32", [t2, u0], (4, 8))
    a("v_rcp_f32 v%d, v%d" % (t2, t2))
    if nh and hpos == 'rcp':
        a("s_cmp_eq_u32 s46, 0\ns_cbranch_scc1 L_nh\ns_mov_b64 exec, 255\n%s\n%s\nL_nh:" % (HOP % (ahs, OGR+3, sp(sWS)), FULL))
    a("v_mul_f32 v%d, v%d, v%d\nv_cvt_pk_bf16_f32 v%d, v%d, v%d" % (u0, u0, t2, u0, u0, u0))
    for t in range(4):
        for q in range(4): a("v_and_b32_dpp v%d, v%d, v%d %s" % (AO+4*t+q, u0, M+q, qp(t)))
        if t > 0: mfma32(acc, AO+4*t-4, WO+4*t-4, t == 1)
    mfma32(acc, AO+12, WO+12, False)
    if nh and hpos == 'mfma':
        a("s_cmp_eq_u32 s46, 0\ns_cbranch_scc1 L_nh\ns_mov_b64 exec, 255\n%s\n%s\nL_nh:" % (HOP % (ahs, OGR+3, sp(sWS)), FULL))
    a("s_cmp_lg_u32 s%d, 0" % sW)
    a("s_mov_b32 exec_hi, 0")
    a("ds_write_b128 v%d, %s offset:%d" % (lsw, vr(acc, 4), L_S))
    warm(kw6w)
    a("s_waitcnt lgkmcnt(0)\ns_barrier")
    a("s_cbranch_scc1 L_nopub")
    a(FULL)
    a("ds_read2st64_b64 %s, v%d offset0:%d offset1:%d" % (vr(u0, 4), vr8, L_S // 512, L_S // 512 + 1))
    a("ds_read2st64_b64 %s, v%d offset0:%d offset1:%d" % (vr(u0+4, 4), vr8, L_S // 512 + 2, L_S // 512 + 3))
    a("ds_read_b64 %s, v%d offset:%d" % (vr(acc+2, 2), vr8, L_Y))
    a("s_waitcnt lgkmcnt(2)"); pkadd(u0, u0, u0+2)
    a("s_waitcnt lgkmcnt(1)"); pkadd(u0+4, u0+4, u0+6); pkadd(acc, u0, u0+4)
    a("s_waitcnt lgkmcnt(0)")
    tagify(acc)
    a("global_store_dwordx4 v%d, %s, %s sc1" % (aps, vr(acc, 4), sp(sWS)))
    stamp("spub")
    if hpos == 'post' and nh: a("s_mov_b64 exec, 255\n" + HOP % (ahs, OGR+3, sp(sWS)))
    if hpos == 'b6':
        a("s_branch L_nopub2")
    a("L_nopub:")
    if hpos == 'b6':
        a("s_cmp_eq_u32 s46, 0\ns_cbranch_scc1 L_nopub2\ns_mov_b64 exec, 255\n" + HOP % (ahs, OGR+3, sp(sWS)))
        a("L_nopub2:")
    if wb == 'b6': a("s_cmp_lg_u32 s47, 3\ns_cbranch_scc1 L_nwb\nbuffer_wbl2 sc1\nL_nwb:")
    if stamps: a("s_add_u32 s%d, s%d, 2\ns_branch L_done" % (sW, sW))
    else: a("s_endpgm")

    def final_consts():
        a("s_lshl_b32 s%d, s%d, 5\ns_add_u32 s%d, s%d, s%d" % (sCQ, sg, sCQ, sCQ, sj))
        a("s_lshr_b32 s14, s%d, 1\ns_lshl_b32 s30, s14, 16\ns_and_b32 s31, s%d, 63\ns_lshl4_add_u32 s30, s31, s30\ns_add_u32 s30, s30, %d" % (sg, sCQ, SP))
        a("v_lshl_add_u32 v%d, v0, 10, s30" % ags)
        a("s_lshr_b32 s30, s%d, 1\ns_lshl4_add_u32 s30, s14, s30\ns_and_b32 s31, s%d, 1\ns_lshl1_add_u32 s30, s30, s31\ns_and_b32 s31, s%d, 1\ns_lshl1_add_u32 s30, s30, s31\ns_lshl_b32 s30, s30, 2" % (sj, sg, sj))
        a("v_and_b32 v%d, 1, v%d\nv_lshl_add_u32 v%d, v%d, 1, s30\nv_mov_b32 v%d, 0" % (vr8, vG, vr8, vr8, XO))
    a("L_F1:")
    a("s_mov_b32 s15, s34")
    masks()
    a("v_and_b32 v%d, 1, v%d\nv_lshl_add_u32 v%d, v%d, 1, v%d\nv_lshl_add_u32 v%d, v%d, 4, s15\nv_lshrrev_b32 v%d, 5, v0\nv_lshl_add_u32 v%d, v%d, 8, v%d" % (t1, vG, t3, vc8, t1, apf, t3, t2, apf, t2, apf))
    a("s_lshr_b32 s14, s40, 2\ns_lshl_b32 s30, s47, 12\ns_lshl_b32 s31, s14, 7\ns_add_u32 s30, s30, s31\ns_add_u32 s30, s30, %d" % FA)
    a("v_lshl_add_u32 v%d, v%d, 4, s30\nv_lshl_add_u32 v%d, v%d, 9, v%d" % (agf, vc8, agf, vr8, agf))
    a("s_lshl1_add_u32 s14, s47, s14\ns_and_b32 s15, s40, 3\ns_lshl_b32 s30, s14, 15\ns_lshl_b32 s31, s15, 8\ns_add_u32 s30, s30, s31\ns_add_u32 s30, s30, 4096")
    a("v_and_b32 v%d, 15, v0\nv_lshl_add_u32 v%d, v%d, 4, s30\nv_lshl_add_u32 v%d, v%d, 10, v%d" % (t2, ad, t2, ad, vG, ad))
    final_consts()
    a("s_lshl_b32 s30, s%d, 7\ns_add_u32 s30, s30, %d\ns_add_u32 s24, s%d, s30\ns_addc_u32 s25, s%d, 0" % (sCQ, HP, sWS, sWS+1))
    mktag(True)

    a("s_cmp_lg_u32 s%d, %d\ns_cbranch_scc1 L_F2" % (sg, gno))
    a("global_load_short_d16_hi v%d, v%d, %s" % (XO, vr8, sp(sX)))
    a("v_mov_b64 %s, 0\nv_mov_b64 %s, 0" % (vr(accf+4, 2), vr(accf+6, 2)))
    for r in qr: a("s_barrier")
    a("s_barrier\ns_barrier\ns_barrier")
    if warmh: a("s_load_dwordx8 s[4:11], s[24:25], 0 glc")
    a("s_branch L_ytag")
    a("L_F2:")
    SF.wait("x")
    layernorm(XX, [XF], SF)
    for r in qr:
        a("s_barrier")
        for k in range(fper): SF.issue()
    for t in range(8):
        for q in range(4): a("v_and_b32_dpp v%d, v%d, v%d %s" % (AF+4*(t & 1)+q, u0+(t & 1), M+q, qp(t >> 1)))
        for b in range(2):
            SF.land("f%d" % (2*t+b))
            mfma32(accf+4*b, AF+4*(t & 1), GU+8*t+4*b, t == 0)
    while SF.pos < SF.N: SF.issue()
    for i in range(4): a("v_permlane32_swap_b32 v%d, v%d" % (accf+i, accf+4+i))
    for i in range(4): a("v_add_f32_dpp v%d, v%d, v%d row_ror:8 %s" % (accf+i, accf+4+i, accf+i, DPPM))
    if force_slow: a("s_xor_b32 s30, s%d, 0x40" % sTA)
    tagify(accf, 30 if force_slow else sTA)
    a("s_mov_b32 exec_lo, 0x00ff00ff\ns_mov_b32 exec_hi, 0x00ff00ff")
    a("global_store_dwordx4 v%d, %s, %s" % (apf, vr(accf, 4), sp(sWS)))
    a(FULL)
    stamp("fpub")
    a("global_load_short_d16_hi v%d, v%d, %s" % (XO, vr8, sp(sX)))
    a("s_barrier\ns_barrier")
    def gf():
        a("global_load_dwordx4 %s, v%d, %s sc1" % (vr(FG, 4), agf, sp(sWS)))
        a("global_load_dwordx4 %s, v%d, %s offset:256 sc1" % (vr(FG+4, 4), agf, sp(sWS)))
    if fgw: a("s_waitcnt vmcnt(0)")
    gf()
    for x in dseq: a(x[1])
    a("s_barrier")
    if warmh: a("s_load_dwordx8 s[4:11], s[24:25], 0 glc")
    a("s_waitcnt vmcnt(%d)" % dlate)
    def fpre():
        ab_switch("L_f", accf, apf, 0x00ff00ff, 0x00ff00ff, agf, FA ^ FB)
    poll("L_f", 2, lambda: untag([FG, FG+4], t0, sTA), gf, fpre)
    tred4([FG, FG+4])
    rorred("v_add_f32", [FG, FG+4], [8])
    a("v_cvt_pk_bf16_f32 v%d, v%d, v%d" % (t0, FG, FG+4)); unpack(FG, t0)
    silu([FG], [t0]); rbf(FG)
    a("v_mul_f32 v%d, v%d, v%d\nv_cvt_pk_bf16_f32 v%d, v%d, v%d" % (FG, FG, FG+1, FG, FG, FG))
    for t in range(8):
        for q in range(4): a("v_and_b32_dpp v%d, v%d, v%d row_newbcast:%d %s" % (AF+4*(t & 1)+q, FG, M+q, t, DPPM))
        if t >= 8 - dlate: a("s_waitcnt vmcnt(%d)" % (7 - t))
        mfma32(accf+4, AF+4*(t & 1), DD+4*t, t == 0)
    a("L_ytag:")
    a("s_mov_b32 exec_hi, 0")
    a("ds_write_b128 v%d, %s offset:%d" % (vl16, vr(accf+4, 4), L_Y))
    a(FULL)
    a("s_mov_b32 s32, s%d\ns_mov_b32 s%d, %d" % (sT, sSpin, maxspin))
    if not warmh: a("s_not_b32 s4, s%d" % sT)
    stamp("ypub")
    a("s_waitcnt lgkmcnt(0)\ns_barrier")
    if nh:
        a("L_h:")
        a("s_load_dwordx8 s[4:11], s[24:25], 0 glc")
        a("s_sub_u32 s%d, s%d, 1\ns_cbranch_scc1 L_hok" % (sSpin, sSpin))
        for rr_ in range(max(1, hnop)):
            if rr_ == 0: a("s_waitcnt lgkmcnt(%d)" % hfree)
            for i in range(4): a("s_xor_b64 %s, %s, s[32:33]" % (sp(12+2*i), sp(4+2*i)))
            a("s_or_b64 s[12:13], s[12:13], s[14:15]\ns_or_b64 s[16:17], s[16:17], s[18:19]\ns_or_b64 s[12:13], s[12:13], s[16:17]")
            a("s_cbranch_scc1 L_h" if rr_ == max(1, hnop) - 1 else "s_cbranch_scc0 L_hok")
        a("L_hok:")
        if stamps: a("s_sub_u32 s%d, %d, s%d" % (NP0 + 3, maxspin - 1, sSpin))
    stamp("yg")
    def res(): a("global_load_dwordx4 %s, v%d, %s sc1" % (vr(w0, 4), ags, sp(sWS)))
    if wb == 'yg':
        res()
        a("s_cmp_lg_u32 s%d, 31\ns_cbranch_scc1 L_nwb\nbuffer_wbl2 sc1\ns_waitcnt vmcnt(1)" % sj)
        untag([w0], t0)
        a("s_and_b64 exec, exec, vcc\ns_cbranch_scc0 L_sok")
        res()
        a("L_nwb:")
    loop_poll("L_s", 4, lambda: untag([w0], t0), res, first_issued=(wb == 'yg'))
    if wb == 'yg': a("L_sok:\n" + FULL)
    if wb == 'sg': a("s_cmp_lg_u32 s%d, 31\ns_cbranch_scc1 L_nwb\nbuffer_wbl2 sc1\nL_nwb:" % sj)
    stamp("sg")
    tred4([w0])
    rorred("v_add_f32", [w0], (8, 4, 2, 1))
    rbf(w0)
    a("v_mul_f32 v%d, 0x%x, v%d\nv_exp_f32 v%d, v%d" % (t0, LOG2E | 0x80000000, w0, t0, t0))
    a("v_mov_b32 v%d, v%d" % (u0, w0))
    a("v_add_f32 v%d, 1.0, v%d\nv_rcp_f32 v%d, v%d" % (t0, t0, t0, t0))
    a("v_permlane32_swap_b32 v%d, v%d  ; upper lanes of the first operand receive s" % (u0+2, u0))
    a("v_mul_f32 v%d, v%d, v%d" % (w0, w0, t0))
    rbf(w0)
    a("s_mov_b32 exec_lo, 0\ns_mov_b32 exec_hi, 0x00010001")
    a("v_mul_f32 v%d, v%d, v%d" % (u0, u0+2, w0))
    rbf(u0)
    a("v_add_f32 v%d, v%d, v%d" % (u0, u0, XO))
    a("v_cvt_pk_bf16_f32 v%d, v%d, v%d" % (u0, u0, u0))
    a("global_store_short v%d, v%d, %s" % (vr8, u0, sp(sOUT)))
    a("s_cmp_lg_u32 s%d, 0\ns_cbranch_scc1 L_done" % sCQ)
    a("s_mov_b64 exec, 1\nv_mov_b32 v%d, 0\nv_mov_b32 v%d, s%d" % (t0, t1, sT))
    a("global_store_dword v%d, v%d, %s %s" % (t0, t1, sp(sWS), ep))
    a("L_done:")
    stamp("end")
    if probe is not None:
        a("s_waitcnt lgkmcnt(0)")
        a("s_cmp_lg_u32 s%d, 3\ns_cbranch_scc1 L_pr1" % sW)
        a("s_mov_b64 exec, 1\ns_lshl_b32 s30, s2, 7\ns_add_u32 s30, s30, %d\nv_mov_b32 v%d, s30\nv_mov_b32 v%d, s%d\nglobal_store_dword v%d, v%d, %s sc1" % (STAMP, t6, t7, st0, t6, t7, sp(sWS)))
        a("L_pr1:")
        a("s_cmp_lg_u32 s2, 0\ns_cbranch_scc1 L_end\ns_cmp_lg_u32 s%d, 1\ns_cbranch_scc1 L_end" % sW)
        a("s_add_u32 s30, s%d, 2500" % st0)
        a("L_pw0:\ns_memrealtime s[34:35]\ns_waitcnt lgkmcnt(0)\ns_sub_u32 s31, s34, s30\ns_cmp_lt_i32 s31, 0\ns_cbranch_scc1 L_pw0")
        a("s_mov_b64 exec, -1\nv_lshlrev_b32 v%d, 9, v0\nv_add_u32 v%d, %d, v%d" % (t4, t4, STAMP, t4))
        for i in range(4): a("global_load_dword v%d, v%d, %s offset:%d sc1" % (t0+i, t4, sp(sWS), 128*i))
        a("s_waitcnt vmcnt(0)")
        for i in range(4): a("v_subrev_u32 v%d, s%d, v%d" % (t0+i, st0, t0+i))
        op = "max" if probe.endswith("-max") else "min"
        a("v_%s3_i32 v%d, v%d, v%d, v%d\nv_%s_i32 v%d, v%d, v%d" % (op, t4, t0, t1, t2, op, t4, t4, t3))
        rorred("v_%s_i32" % op, [t4], (8, 4, 2, 1)); swapred("v_%s_i32" % op, [t4], [t6])
        a("v_readfirstlane_b32 s46, v%d" % t4)
        a("s_add_u32 s46, s46, s%d" % st0)
        k = STN.index(probe.replace("-max", ""))
        a("s_sub_u32 s30, s%d, s46\ns_mul_i32 s30, s30, 10\ns_add_u32 s30, s30, 4000\ns_min_u32 s30, s30, 100000\ns_add_u32 s30, s30, s%d" % (st0+2*k, st0))
        a("L_pw:\ns_memrealtime s[34:35]\ns_waitcnt lgkmcnt(0)\ns_sub_u32 s31, s34, s30\ns_cmp_lt_i32 s31, 0\ns_cbranch_scc1 L_pw")
    elif stamps:
        a("s_waitcnt lgkmcnt(0)\ns_cmp_lg_u32 s%d, 0\ns_cbranch_scc1 L_stw\ns_barrier\ns_barrier\ns_barrier\nL_stw:" % sW)
        a("s_mov_b64 exec, 1")
        a("s_mul_i32 s30, s2, 6\ns_add_u32 s30, s30, s%d\ns_lshl_b32 s30, s30, 7\ns_add_u32 s30, s30, %d\nv_mov_b32 v%d, s30" % (sW, STAMP, t0))
        a("s_add_u32 s30, s%d, 1200\nL_sw:\ns_memrealtime s[34:35]\ns_waitcnt lgkmcnt(0)\ns_sub_u32 s31, s34, s30\ns_cmp_lt_i32 s31, 0\ns_cbranch_scc1 L_sw" % st0)
        for i in range(len(STN)):
            a("v_mov_b32 v%d, s%d\nglobal_store_dword v%d, v%d, %s offset:%d" % (t1, st0+2*i, t0, t1, sp(sWS), 4*i))
        for i in range(5):
            a("s_mul_i32 s30, s%d, 100\ns_add_u32 s30, s30, s%d\nv_mov_b32 v%d, s30\nglobal_store_dword v%d, v%d, %s offset:%d" % (NP0+i, st0, t1, t0, t1, sp(sWS), 4*(len(STN)+i)))
    a("s_endpgm")
    a.lines.extend(tail)
    a("L_end:\ns_endpgm")
    nv = max(VA.hi, VF.hi, VQ.hi)
    text = fix_hazards(a.text())
    open(fn, "w").write(wrap(text, 256, 384, 12800, nv, 102 if stamps else 52, align=align))
    print(fn, "vgprs A/F/Q", VA.hi, VF.hi, VQ.hi)

if __name__ == "__main__":
    gen("v4.s")
    gen("v4_st.s", stamps=True)
    gen("v4_slow_st.s", stamps=True, force_slow=True)
    print(",".join(STN) + ",n0,n1,n2,n3,n4")
```

```python
from gen4 import gen
def sch(*p):
    def f(k):
        w = p[0]
        for i in range(1, len(p), 2):
            if k >= p[i]: w = p[i+1]
        return w
    return f
best = dict(R=4, qr=(-1,6,16), mkt=16, trig='mk', wa=sch(4,12,5,14,6), pol=1, WF=8, b3pos=7, nh=8, hpos='b6', warmh=True, fgw=True, rot=3, hfree=4, hnop=4, free=[(0,3),(0,2),(4,3),(4,2)])
if __name__ == "__main__":
    gen('best.s', **best)
    gen('best_pe.s', probe='end', **best)
    gen('best_slow.s', force_slow=True, **best)
    d = dict(best); d['hpos'] = 'post'
    gen('best_post_pe.s', probe='end', **d)
```

```python
import sys
from asmlib import *

QA, QB, FA, FB, OP, SP, HP = 0x10000, 0x20000, 0x40000, 0x60000, 0x80000, 0x100000, 0x140000
STAMP = 0x10000000
LOG2E = 0x3fb8aa3b
SCALE = 0x3db504f3
EPS = 0x3727c5ac
DPPM = "row_mask:0xf bank_mask:0xf"
STN = "start,karg,x,ln,q,qpub,qg1,qg,fpub,k,b3,p,v,opub,og1,og,spub,ypub,yg,sg,end".split(",")

def gen(fn, stamps=False, nt="nt", R=4, fper=2, WF=8, wa=lambda k: 5, mk=2, b3pos=9, gno=4, atries=4, maxspin=100000,
        force_slow=False, probe=None, ticks=True, align=12, mkt=None, nh=16, hdelay=0, fretry=1, qr=(), ep='', wb=None, hpos='post', warmh=False, kw5=0, kwo=0, od=0, kw6=0, kws=0, kw6w=0, hfree=4, hnop=4, hatom=True, fgw=True, kw5w=0, dlate=0, rot=3, trig='mk', vpf=0, dly=0, free=None, abl='', early=True, hm=1, lf=False, hsp=False, pol=None, h2=False, ocont=True, outfl='', owarm=None):
    HEX = {1: '255', 2: '0xffff', 4: '0xffffffff'}[2 if h2 else hm]
    if free is None: free = [(gno, q) for q in range(4)]
    fmask = sum(1 << (4*g_ + q_) for g_, q_ in free); assert bin(fmask).count('1') == 4
    if probe is not None: stamps = True
    a = Asm()
    def vr(r, n): return "v[%d:%d]" % (r, r + n - 1)
    def sp(r): return "s[%d:%d]" % (r, r + 1)
    class RA:
        def __init__(s, n): s.n = n; s.hi = n
        def __call__(s, k=1):
            if k >= 2 and s.n % 2: s.n += 1
            r = s.n; s.n += k; s.hi = max(s.hi, s.n); return r
    sX, sK, sV, sWQ, sWO, sG, sU, sD, sOUT, sWS = 4, 6, 8, 10, 12, 16, 18, 20, 22, 26
    sW, sg, sj = 3, 28, 29
    sT, sTb, sSpin, sXC, sTA, sFlag, sCQ, sNB = 33, 36, 41, 42, 43, 44, 45, 46
    st0 = 54
    def stamp(name):
        if stamps:
            k = STN.index(name); a("s_memrealtime s[%d:%d]" % (st0 + 2*k, st0 + 2*k + 1))
    NP0 = st0 + 2*len(STN)
    assert NP0 + 5 <= 102
    FULL = "s_mov_b64 exec, -1"
    L_QB, L_ML, L_FL, L_O, L_S = 0, 1024, 1280, 2048, 10240
    L_Y = L_S + 2048
    L_G = 1152
    HOP = 'global_atomic_swap v%d, v%d, %s' if hatom else 'global_store_dword v%d, v%d, %s sc1'
    V = RA(1)
    vG = V(); t0 = V(8); t1, t2, t3, t4, t5, t6, t7 = [t0 + i for i in range(1, 8)]
    u0 = V(8); w0 = V(8); M = V(4); vr8, vc8, vc4, vFF, vl16 = V(), V(), V(), V(), V()
    base_regs = V.n
    tail = []

    class Stream:
        def __init__(s): s.issued = []
        def vm(s, name, text): a(text); s.issued.append(name)
        def wait(s, name):
            idx = max(i for i, x in enumerate(s.issued) if x == name)
            a("s_waitcnt vmcnt(%d)" % (len(s.issued) - 1 - idx))
        def setseq(s, seq, win):
            s.seq = seq; s.names = [x[0] for x in seq]; s.pos = 0; s.landed = 0; s.win = win; s.N = len(seq)
        def issue(s):
            if s.pos < s.N: s.vm(*s.seq[s.pos]); s.pos += 1
        def land(s, name):
            idx = s.names.index(name)
            while s.landed <= idx:
                while s.pos <= s.landed: s.issue()
                k = s.landed
                while k < idx and (s.pos == s.N or s.pos - (k + 1) >= s.win(s.pos)): k += 1
                s.wait(s.names[k]); s.landed = k + 1
                while s.pos < s.N and s.pos - s.landed < s.win(s.pos): s.issue()
        def tick(s):
            if ticks: s.issue()

    def warm(n):
        for i in range(n): a("v_mov_b32 v%d, v%d\ns_nop 2" % (vc4, vc4))
    def unpack(dst, src): a("v_lshlrev_b32 v%d, 16, v%d\nv_and_b32 v%d, 0xffff0000, v%d" % (dst, src, dst+1, src))
    def rorred(op, regs, ks):
        for k in ks:
            for r in regs: a("%s_dpp v%d, v%d, v%d row_ror:%d %s" % (op, r, r, r, k, DPPM))
    def swapred(op, regs, tmps):
        for sw in ("v_permlane16_swap_b32", "v_permlane32_swap_b32"):
            for r, t in zip(regs, tmps): a("v_mov_b32 v%d, v%d" % (t, r))
            for r, t in zip(regs, tmps): a("%s v%d, v%d" % (sw, r, t))
            for r, t in zip(regs, tmps): a("%s v%d, v%d, v%d" % (op, r, r, t))
    def pkadd(d, x, y): a("v_pk_add_f32 %s, %s, %s" % (vr(d, 2), vr(x, 2), vr(y, 2)))
    def add4(d, x, y): pkadd(d, x, y); pkadd(d+2, x+2, y+2)
    def tred4(rs):
        for r in rs: a("v_permlane32_swap_b32 v%d, v%d\nv_permlane32_swap_b32 v%d, v%d" % (r, r+2, r+1, r+3))
        for r in rs: pkadd(r, r, r+2)
        for r in rs: a("v_permlane16_swap_b32 v%d, v%d" % (r, r+1))
        for r in rs: a("v_add_f32 v%d, v%d, v%d" % (r, r, r+1))
    def silu(rs, tmps):
        for r, t in zip(rs, tmps): a("v_mul_f32 v%d, 0x%x, v%d" % (t, LOG2E | 0x80000000, r))
        for r, t in zip(rs, tmps): a("v_exp_f32 v%d, v%d" % (t, t))
        for r, t in zip(rs, tmps): a("v_add_f32 v%d, 1.0, v%d" % (t, t))
        for r, t in zip(rs, tmps): a("v_rcp_f32 v%d, v%d" % (t, t))
        for r, t in zip(rs, tmps): a("v_mul_f32 v%d, v%d, v%d" % (r, r, t))
    def rbf(r, dst=None): a("v_cvt_pk_bf16_f32 v%d, v%d, v%d\nv_lshlrev_b32 v%d, 16, v%d" % (r, r, r, r if dst is None else dst, r))
    def masks():
        a("v_and_b32 v%d, 1, v0\nv_lshlrev_b32 v%d, 4, v%d\nv_mov_b32 v%d, 0xffff\nv_lshlrev_b32 v%d, v%d, v%d" % (t1, t1, t1, t2, t1, t1, t2))
        a("v_lshrrev_b32 v%d, 1, v%d" % (t2, vc8))
        cm = (48, 50, 30, 34)
        for q in range(4): a("v_cmp_eq_u32 %s, %d, v%d" % (sp(cm[q]), q, t2))
        for q in range(4): a("v_cndmask_b32 v%d, 0, v%d, %s" % (M+q, t1, sp(cm[q])))
        a("v_mov_b32 v%d, 0xffffff00" % vFF)
    def mktag(local):
        a("s_waitcnt lgkmcnt(0)")
        a("s_mul_i32 s%d, s%d, 0x0019660d\ns_add_u32 s%d, s%d, 0x3c6ef35f" % (sT, sT, sT, sT))
        for i in range(4): a("s_bfe_u32 s%d, s%d, 0x%x" % (sTb+i, sT, (8 << 16) | (8*i)))
        if local:
            a("s_getreg_b32 s%d, hwreg(HW_REG_XCC_ID, 0, 4)\ns_lshl1_add_u32 s%d, s%d, 32\ns_xor_b32 s%d, s%d, s%d" % (sXC, sXC, sXC, sTA, sTb, sXC))
    def tagify(r, s0=None):
        for i in range(4): a("v_and_or_b32 v%d, v%d, v%d, s%d" % (r+i, r+i, vFF, (s0 if (i == 0 and s0) else sTb+i)))
    def untag(rs, chk, s0=None):
        for r in rs:
            for i in range(4): a("v_xor_b32 v%d, s%d, v%d" % (r+i, (s0 if (i == 0 and s0) else sTb+i), r+i))
        regs = [r+i for r in rs for i in range(4)]
        a("v_or3_b32 v%d, v%d, v%d, v%d" % (chk, regs[0], regs[1], regs[2])); regs = regs[3:]
        while len(regs) >= 2:
            a("v_or3_b32 v%d, v%d, v%d, v%d" % (chk, chk, regs[0], regs[1])); regs = regs[2:]
        if regs: a("v_or_b32 v%d, v%d, v%d" % (chk, chk, regs[0]))
        a("v_cmp_ne_u32_sdwa vcc, v%d, 0 src0_sel:BYTE_0 src1_sel:DWORD" % chk)
    def poll(label, np_, check, reissue, pre=None):
        a("s_mov_b32 s%d, 0" % sSpin)
        a("%s_chk:" % label)
        check()
        a("s_and_b64 exec, exec, vcc\ns_cbranch_scc1 %s_re" % label)
        a("%s_ok:" % label)
        a(FULL)
        if stamps: a("s_mov_b32 s%d, s%d" % (NP0 + np_, sSpin))
        keep = a.lines; a.lines = []
        a("%s_re:" % label)
        a("s_add_u32 s%d, s%d, 1\ns_cmp_ge_u32 s%d, %d\ns_cbranch_scc1 %s_ok" % (sSpin, sSpin, sSpin, maxspin, label))
        if pre: pre()
        reissue()
        a("s_waitcnt vmcnt(0)\ns_branch %s_chk" % label)
        tail.extend(a.lines); a.lines = keep
    def loop_poll(label, np_, check, issue, first_issued=False, between=None):
        a("s_mov_b32 s%d, %d" % (sSpin, maxspin))
        if first_issued: a("s_branch %s_w" % label)
        a("%s:" % label)
        issue()
        a("%s_w:" % label)
        a("s_sub_u32 s%d, s%d, 1\ns_cselect_b64 s[34:35], 0, exec" % (sSpin, sSpin))
        if between: between()
        a("s_waitcnt vmcnt(0)")
        check()
        a("s_and_b64 exec, s[34:35], vcc\ns_cbranch_scc1 %s" % label)
        a(FULL)
        if stamps: a("s_sub_u32 s%d, %d, s%d" % (NP0 + np_, maxspin - 1, sSpin))
    def ab_switch(label, pubregs, pubaddr, publo, pubhi, gaddr, delta):
        a("s_cmp_lt_u32 s%d, %d\ns_cbranch_scc1 %s_same" % (sSpin, atries, label))
        a("s_cmp_lg_u32 s%d, %d\ns_cbranch_scc1 %s_tog" % (sSpin, atries, label))
        a("s_mov_b64 s[30:31], exec\ns_mov_b32 exec_lo, 0x%x\ns_mov_b32 exec_hi, 0x%x\ns_mov_b32 s%d, 1" % (publo, pubhi, sFlag))
        a("v_and_or_b32 v%d, v%d, v%d, s%d\nv_xor_b32 v%d, 0x%x, v%d" % (pubregs, pubregs, vFF, sTb, pubaddr, delta, pubaddr))
        a("global_store_dwordx4 v%d, %s, %s sc1\ns_mov_b64 exec, s[30:31]" % (pubaddr, vr(pubregs, 4), sp(sWS)))
        a("%s_tog:" % label)
        a("s_xor_b32 s%d, s%d, s%d\nv_xor_b32 v%d, 0x%x, v%d" % (sTA, sTA, sXC, gaddr, delta, gaddr))
        a("%s_same:" % label)
    def layernorm(X, srcs, S):
        n = len(srcs)
        a("v_readfirstlane_b32 s30, v%d" % X)
        for i in range(4): unpack(u0+2*i, X+i)
        a("s_lshl_b32 s30, s30, 16\ns_mov_b32 s31, s30")
        for i in range(4): a("v_pk_add_f32 %s, %s, s[30:31] neg_lo:[0,1] neg_hi:[0,1]" % (vr(u0+2*i, 2), vr(u0+2*i, 2)))
        pkadd(t0, u0, u0+2); a("v_pk_mul_f32 %s, %s, %s" % (vr(t2, 2), vr(u0, 2), vr(u0, 2)))
        pkadd(t0, t0, u0+4); a("v_pk_fma_f32 %s, %s, %s, %s" % (vr(t2, 2), vr(u0+2, 2), vr(u0+2, 2), vr(t2, 2)))
        pkadd(t0, t0, u0+6); a("v_pk_fma_f32 %s, %s, %s, %s" % (vr(t2, 2), vr(u0+4, 2), vr(u0+4, 2), vr(t2, 2)))
        a("v_pk_fma_f32 %s, %s, %s, %s\nv_add_f32 v%d, v%d, v%d" % (vr(t2, 2), vr(u0+6, 2), vr(u0+6, 2), vr(t2, 2), t0, t0, t1))
        a("v_add_f32 v%d, v%d, v%d" % (t1, t2, t3))
        fill = []
        for i, s_ in enumerate(srcs): fill += ["v_lshlrev_b32 v%d, 16, v%d" % (u0+2*i, s_), "v_and_b32 v%d, 0xffff0000, v%d" % (u0+2*i+1, s_)]
        for k in (8, 4, 2, 1):
            if fill: a(fill.pop(0))
            rorred("v_add_f32", [t0, t1], [k])
        swapred("v_add_f32", [t0, t1], [t2, t3])
        a("v_mul_f32 v%d, 0x3b000000, v%d\nv_mul_f32 v%d, 0x3b000000, v%d" % (t0, t0, t1, t1))
        a("v_fma_f32 v%d, -v%d, v%d, v%d  ; var\nv_add_f32 v%d, s30, v%d  ; mean" % (t1, t0, t0, t1, t0, t0))
        a("v_max_f32 v%d, 0, v%d" % (t1, t1))
        a("v_cvt_pk_bf16_f32 v%d, v%d, v%d" % (t0, t0, t1))
        a("v_and_b32 v%d, 0xffff0000, v%d\nv_lshlrev_b32 v%d, 16, v%d" % (t2, t0, t0, t0))
        a("v_add_f32 v%d, 0x%x, v%d" % (t2, EPS, t2))
        for i in range(n): a("v_pk_add_f32 %s, %s, %s op_sel_hi:[1,0] neg_lo:[0,1] neg_hi:[0,1]" % (vr(u0+2*i, 2), vr(u0+2*i, 2), vr(t0, 2)))
        rbf(t2); a("v_sqrt_f32 v%d, v%d" % (t2, t2))
        for i in range(n): a("v_cvt_pk_bf16_f32 v%d, v%d, v%d" % (t4+i, u0+2*i, u0+2*i+1))
        rbf(t2); a("v_rcp_f32 v%d, v%d" % (t2, t2))
        for i in range(n): unpack(u0+2*i, t4+i)
        for i in range(n): a("v_pk_mul_f32 %s, %s, %s op_sel_hi:[1,0]" % (vr(u0+2*i, 2), vr(u0+2*i, 2), vr(t2, 2)))
        for i in range(2*n): a("v_cvt_pk_bf16_f32 v%d, v%d, v%d" % (u0+i, u0+i, u0+i))
    def qp(c): return "quad_perm:[%d,%d,%d,%d] %s" % (c, c, c, c, DPPM)
    def mfma32(d, A, B, first): a("v_mfma_f32_16x16x32_bf16 %s, %s, %s, %s" % (vr(d, 4), vr(A, 4), vr(B, 4), "0" if first else vr(d, 4)))

    if stamps:
        a("s_memrealtime s[%d:%d]" % (st0, st0+1))
    if dly:
        a("s_and_b32 s3, s2, 7\ns_cbranch_scc1 L_nd\ns_movk_i32 s3, %d\nL_dl:\ns_nop 10\ns_sub_u32 s3, s3, 1\ns_cbranch_scc0 L_dl\nL_nd:" % dly)
    a("s_load_dwordx16 s[4:19], s[0:1], 0\ns_load_dwordx8 s[20:27], s[0:1], 64")
    a("s_cmp_ge_u32 s2, 256\ns_cbranch_scc1 L_end")
    a("v_lshrrev_b32 v%d, 6, v0\nv_and_b32 v0, 63, v0" % t0)
    a("v_readfirstlane_b32 s%d, v%d" % (sW, t0))
    a("s_and_b32 s%d, s2, 7\ns_lshr_b32 s%d, s2, 3" % (sg, sj))
    a("v_lshrrev_b32 v%d, 4, v0\nv_lshrrev_b32 v%d, 3, v0\nv_and_b32 v%d, 7, v0\nv_and_b32 v%d, 3, v0\nv_lshlrev_b32 v%d, 4, v0" % (vG, vr8, vc8, vc4, vl16))
    if stamps:
        for k in range(1, len(STN)): a("s_mov_b32 s%d, 0" % (st0 + 2*k))
        for k in range(5): a("s_mov_b32 s%d, 0" % (NP0 + k))
    a("s_cmp_eq_u32 s%d, 0\ns_cbranch_scc1 L_Q0\ns_cmp_eq_u32 s%d, 1\ns_cbranch_scc1 L_F0" % (sW, sW))

    VA = RA(base_regs); SA = Stream()
    ak0, ak1, av0, av1, ao0, ao1, ago0, ago1, apo, aps, lqr, lml, low, lor, lsw, ahs = [VA() for _ in range(16)]
    Ma = VA(2); S0 = VA(4); KK = VA(32); VV = VA(32); WO = VA(16); QF = VA(4); acc = VA(8); OGR = VA(4)
    assert KK == S0 + 4
    PA = KK; OG = KK + 16; AO = KK
    a("s_sub_u32 s%d, s%d, 2" % (sW, sW))
    a("s_getpc_b64 s[48:49]\ns_and_b32 s48, s48, 0xffffff00\ns_lshl2_add_u32 s47, s%d, s%d\ns_lshl_b32 s31, s47, 7\ns_cmp_lt_u32 s31, L_end-%s_kernel-256\ns_cbranch_scc0 L_nopf" % (sj, sW, NAME))
    a("v_mov_b32 v%d, s31\ns_mov_b64 exec, 1\nglobal_load_dword v%d, v%d, s[48:49]\n%s" % (t5, OGR, t5, FULL))
    a("L_nopf:")
    if rot == 'lin':
        a("s_lshl_b32 s30, s%d, 24\ns_lshl_b32 s31, s47, 12\ns_add_u32 s30, s30, s31\ns_add_u32 s34, s30, %d\ns_add_u32 s35, s34, 0x80000" % (sg, 61440*256))
    else:
        a("s_lshl_b32 s30, s%d, 24\ns_lshl_b32 s31, s%d, 15\ns_add_u32 s30, s30, s31\ns_add_u32 s30, s30, %d" % (sg, sj, 61440*256))
        if rot == 1: a("s_add_u32 s31, s%d, s%d\ns_add_u32 s31, s31, s%d" % (sj, sg, sW))
        if rot == 3: a("s_add_u32 s31, s%d, s%d" % (sg, sW))
        if rot == 4: a("s_lshl2_add_u32 s31, s%d, s%d" % (sg, sW))
        a("s_and_b32 s31, s31, 7\ns_lshl_b32 s31, s31, 12\ns_add_u32 s34, s31, s30\ns_xor_b32 s31, s31, 0x4000\ns_add_u32 s35, s31, s30")
    a("v_bfe_u32 v%d, v0, 2, 2\nv_lshlrev_b32 v%d, 4, v%d\nv_lshl_add_u32 v%d, v%d, 6, v%d\nv_lshl_add_u32 v%d, v%d, 8, v%d" % (t4, t7, vc4, lqr, vG, t7, lqr, t4, lqr))
    a("v_add_u32 v%d, s34, v%d\nv_add_u32 v%d, s35, v%d" % (ak0, lqr, ak1, lqr))
    a("v_add_u32 v%d, s34, v%d\nv_add_u32 v%d, s35, v%d" % (av0, vl16, av1, vl16))
    seq = []
    for i in range(8): seq.append(("k%d" % i, "global_load_dwordx4 %s, v%d, %s offset:%d %s" % (vr(KK+4*i, 4), (ak0, ak1)[i >> 2], sp(sK), (i & 3)*1024, nt)))
    for i in range(8): seq.append(("v%d" % i, "global_load_dwordx4 %s, v%d, %s offset:%d %s" % (vr(VV+4*i, 4), (av0, av1)[i >> 2], sp(sV), (i & 3)*1024, nt)))
    for t in range(4): seq.append(("o%d" % t, "global_load_dwordx4 %s, v%d, %s offset:%d %s" % (vr(WO+4*t, 4), (ao0, ao1)[t >> 1], sp(sWO), ((t & 1) - 1)*4096, nt)))
    SA.setseq(seq, wa)
    a("s_waitcnt lgkmcnt(0)")
    a("s_load_dword s%d, %s, 0" % (sT, sp(sWS)))
    R0 = R - len(qr)
    XR = 1 if (early and -1 in qr) else 0
    for r in range(R0 + XR):
        a("s_barrier"); SA.issue()
    a("s_branch L_A1")

    VF = RA(base_regs); SF = Stream()
    af, ad, apf, agf, apy, ags, XF, XO = [VF() for _ in range(8)]
    XX = VF(4); GU = VF(64); DD = VF(32); AF = VF(8); accf = VF(8)
    FG = GU; YG = GU + 8
    a("L_F0:")
    a("s_lshr_b32 s31, s%d, 3\ns_lshl2_add_u32 s46, s%d, s31\ns_bfm_b32 s30, s46, 0\ns_and_b32 s30, s30, 0x%x\ns_bcnt1_i32_b32 s30, s30\ns_sub_u32 s47, s46, s30  ; cb" % (sj, sg, fmask))
    a("s_and_b32 s40, s%d, 7\ns_lshl_b32 s30, s40, 6" % sj)
    a("v_lshl_add_u32 v%d, v%d, 1, s30\nv_lshl_add_u32 v%d, v%d, 4, v%d\nv_lshlrev_b32 v%d, 1, v%d" % (t4, vr8, t1, vc4, t4, t1, t1))
    a("s_lshl_b32 s31, s47, 7\nv_lshl_add_u32 v%d, v%d, 4, s31\ns_movk_i32 s30, 3584\nv_mad_u32_u24 v%d, v%d, s30, v%d\ns_mov_b32 s32, %d" % (af, vc8, af, t4, af, 16*3584))
    a("s_lshl3_add_u32 s30, s47, s40\ns_lshl_b32 s30, s30, 9\ns_add_u32 s34, s30, %d\nv_lshl_add_u32 v%d, v0, 7, s34" % (FA, t2))
    seq = []
    for t in range(8):
        for b, base in enumerate((sG, sU)):
            pre = "v_add_u32 v%d, s32, v%d\n" % (af, af) if (b == 0 and t and t % 2 == 0) else ""
            seq.append(("f%d" % (2*t+b), pre + "global_load_dwordx4 %s, v%d, %s offset:%d %s" % (vr(GU+8*t+4*b, 4), af, sp(base), (t & 1)*3584, nt)))
    for t in range(8):
        pre = "v_add_u32 v%d, 0x2000, v%d\n" % (ad, ad) if (t and t % 2 == 0) else ""
        seq.append(("d%d" % t, pre + "global_load_dwordx4 %s, v%d, %s offset:%d %s" % (vr(DD+4*t, 4), ad, sp(sD), ((t & 1) - 1)*4096, nt)))
    dseq = seq[24-dlate:]; seq = seq[:24-dlate]
    SF.setseq(seq, lambda k: WF)
    a("s_waitcnt lgkmcnt(0)")
    a("s_load_dword s%d, %s, 0" % (sT, sp(sWS)))
    a("s_bitcmp1_b32 0x%x, s46\ns_cbranch_scc1 L_F0n" % fmask)
    SF.vm("x", "global_load_dwordx4 %s, v%d, %s" % (vr(XX, 4), vl16, sp(sX)))
    SF.vm("x", "global_load_dword v%d, v%d, %s" % (XF, t1, sp(sX)))
    for r in range(R0 + XR):
        a("s_barrier")
        for k in range(fper): SF.issue()
    a("s_mov_b64 exec, 15")
    SF.vm("wm", "global_load_dword v%d, v%d, %s nt" % (DD+31, t2, sp(sWS)))
    a(FULL)
    a("s_branch L_F1")
    a("L_F0n:")
    SP_ = Stream(); pseq = []
    if vpf:
        assert rot == 3
        a("s_lshl_b32 s30, s%d, 15\ns_add_u32 s30, s30, %d\nv_add_u32 v%d, s30, v%d" % (sj, (gno << 24) + 61440*256, af, vl16))
        for i in range(8 - vpf, 8):
            for w in range(4):
                off = ((((gno + w) & 7) ^ (4 * (i >> 2))) << 12) + (i & 3) * 1024
                k_ = len(pseq)
                pseq.append(("p%d" % k_, "v_add_u32 v%d, %d, v%d\nglobal_load_dwordx4 %s, v%d, %s %s" % (XF, off, af, vr(GU+4*(k_ % 16), 4), XF, sp(sV), nt)))
    SP_.setseq(pseq, lambda k: WF)
    for r in range(R if early else R0):
        a("s_barrier")
        for k in range(fper): SP_.issue()
    a("s_branch L_F1n" if early else "s_branch L_F1")

    VQ = RA(base_regs); SQ = Stream()
    aq, apq, agq, amk = VQ(), VQ(), VQ(), VQ()
    XX2 = VQ(4); XQ = VQ(2); WQ = VQ(64); AQ = VQ(8); accq = VQ(4); QG = VQ(32)
    a("L_Q0:")
    a("s_lshr_b32 s30, s%d, 3\ns_lshl_b32 s30, s30, 7" % sj)
    a("v_lshl_add_u32 v%d, v%d, 2, s30\nv_lshl_add_u32 v%d, v%d, 5, v%d\nv_lshlrev_b32 v%d, 1, v%d" % (t4, vr8, t1, vc4, t4, t1, t1))
    a("s_and_b32 s32, s%d, 7\ns_lshl3_add_u32 s31, s%d, s32\ns_lshl_b32 s31, s31, 7" % (sj, sg))
    a("v_lshl_add_u32 v%d, v%d, 4, s31\nv_lshl_add_u32 v%d, v%d, 13, v%d" % (aq, vc8, aq, t4, aq))
    a("s_movk_i32 s34, 0x2000\ns_mov_b32 s35, %d" % (29*8192))
    a("s_lshl_b32 s47, s%d, 5\ns_add_u32 s47, s47, s%d  ; g*32+j\ns_lshl_b32 s30, s47, 8\ns_add_u32 s40, s30, %d\nv_lshl_add_u32 v%d, v0, 7, s40" % (sg, sj, QA, t2))
    a("s_lshl_b32 s30, s47, 11\ns_add_u32 s30, s30, %d\nv_lshl_add_u32 v%d, v0, 7, s30" % (OP, amk))
    a("s_waitcnt lgkmcnt(0)")
    stamp("karg")
    SQ.vm("x", "global_load_dwordx4 %s, v%d, %s" % (vr(XX2, 4), vl16, sp(sX)))
    SQ.vm("x", "global_load_dwordx2 %s, v%d, %s" % (vr(XQ, 2), t1, sp(sX)))
    for t in range(16):
        if t: a("v_add_u32 v%d, s%d, v%d" % (aq, 35 if t % 4 == 0 else 34, aq))
        SQ.vm("q%d" % t, "global_load_dwordx4 %s, v%d, %s %s" % (vr(WQ+4*t, 4), aq, sp(sWQ), nt))
        if t == 7:
            a("s_mov_b64 exec, 3")
            SQ.vm("wm", "global_load_dword v%d, v%d, %s nt" % (QG, t2, sp(sWS)))
            a(FULL)
    a("s_load_dword s%d, %s, 0" % (sT, sp(sWS)))
    def marker():
        if 'W' in abl:
            SQ.vm("mk", "global_load_dword v%d, v%d, %s" % (amk, vl16, sp(sX))); return
        a("s_mov_b64 exec, 0xffff")
        SQ.vm("mk", "global_load_dword v%d, v%d, %s nt" % (amk, amk, sp(sWS)))
        a(FULL)
    for r in range(R0):
        a("s_barrier")
        if r == mk and mkt is None: marker()
    masks()
    if mk >= R0 and mkt is None: marker()
    a("v_and_b32 v%d, 1, v%d\nv_lshl_add_u32 v%d, v%d, 1, v%d\nv_lshl_add_u32 v%d, v%d, 4, s40" % (t1, vG, t1, vc8, t1, apq, t1))
    a("s_lshl_b32 s30, s%d, 13\ns_add_u32 s30, s30, %d\nv_add_u32 v%d, s30, v%d\ns_mov_b32 s%d, 0" % (sg, QA + 4096, agq, vl16, sFlag))
    SQ.wait("x")
    if -1 in qr: a("s_barrier")
    stamp("x")
    layernorm(XX2, [XQ, XQ+1], SQ)
    stamp("ln")
    for t in range(16):
        for q in range(4): a("v_and_b32_dpp v%d, v%d, v%d %s" % (AQ+4*(t & 1)+q, u0+(t & 3), M+q, qp(t >> 2)))
        if t == 14: mktag(True)
        SQ.wait("q%d" % t)
        if t in qr: a("s_barrier")
        mfma32(accq, AQ+4*(t & 1), WQ+4*t, t == 0)
        if t == mkt: marker()
    stamp("q")
    a("v_mov_b64 %s, %s\nv_mov_b64 %s, %s" % (vr(t0, 2), vr(accq, 2), vr(t2, 2), vr(accq+2, 2)))
    for i in range(4): a("v_permlane32_swap_b32 v%d, v%d" % (accq+i, t0+i))
    for i in range(4): a("v_add_f32_dpp v%d, v%d, v%d row_ror:8 %s" % (accq+i, t0+i, accq+i, DPPM))
    if force_slow: a("s_xor_b32 s30, s%d, 0x40" % sTA)
    tagify(accq, 30 if force_slow else sTA)
    a("s_mov_b64 exec, 0x00ff00ff")
    SQ.vm("st", "global_store_dwordx4 v%d, %s, %s" % (apq, vr(accq, 4), sp(sWS)))
    a(FULL)
    stamp("qpub")
    for r in qr:
        if r >= 16: a("s_barrier")
    if mkt == 16:
        marker()
        if stamps: SQ.wait("st"); stamp("x")
    if mkt == 17:
        SQ.wait("st"); stamp("x"); marker()
    if 'Q' in abl:
        a("v_mov_b32 v%d, 0\nds_write_b32 v%d, v%d offset:%d\ns_waitcnt lgkmcnt(0)" % (t0, t0, t0, L_FL))
        if mkt == 18: marker()
        a("s_barrier\ns_branch L_done")
    SQ.wait(trig)
    stamp("ln")
    def gq():
        for i in range(8): a("global_load_dwordx4 %s, v%d, %s offset:%d sc1" % (vr(QG+4*i, 4), agq, sp(sWS), i*1024 - 4096))
    gq()
    if mkt == 18: marker()
    a("v_lshlrev_b32 v%d, 3, v0" % t6)
    a("s_waitcnt vmcnt(%d)" % (1 if mkt == 18 else 0))
    stamp("qg1")
    poll("L_q", 0, lambda: untag([QG+4*i for i in range(8)], t0, sTA), gq, lambda: ab_switch("L_q", accq, apq, 0x00ff00ff, 0, agq, QA ^ QB))
    for hh in range(2):
        add4(QG+4*hh, QG+4*hh, QG+8+4*hh); add4(QG+16+4*hh, QG+16+4*hh, QG+24+4*hh)
    for hh in range(2): add4(QG+4*hh, QG+4*hh, QG+16+4*hh)
    for i in range(4): a("v_cvt_pk_bf16_f32 v%d, v%d, v%d" % (t0+i, QG+2*i, QG+2*i+1))
    a("v_mov_b32 v%d, s%d" % (t4, sFlag))
    a("ds_write2st64_b64 v%d, %s, %s offset0:%d offset1:%d" % (t6, vr(t0, 2), vr(t2, 2), L_QB // 512, L_QB // 512 + 1))
    a("ds_write_b32 v%d, v%d offset:%d" % (t6, t4, L_FL))
    if lf: a("v_mov_b32 v%d, 0\nv_lshlrev_b32 v%d, 2, v%d\nds_write_b32 v%d, v%d offset:%d" % (t5, t7, vc4, t7, t5, L_G))
    a("s_waitcnt lgkmcnt(0)")
    stamp("qg")
    a("s_barrier")
    a("s_branch L_done" if stamps else "s_endpgm")

    a("L_A1:")
    masks()
    a("v_or_b32 v%d, v%d, v%d\nv_or_b32 v%d, v%d, v%d" % (Ma, M, M+2, Ma+1, M+1, M+3))
    a("s_mov_b32 s48, 0xaaaaaaaa\ns_mov_b32 s49, s48\ns_mov_b32 s50, 0xcccccccc\ns_mov_b32 s51, s50")
    a("v_and_b32 v%d, 15, v0\nv_lshlrev_b32 v%d, 4, v%d  ; n, n*16" % (t6, t5, t6))
    a("s_lshr_b32 s14, s%d, 2\ns_lshl3_add_u32 s15, s%d, s14  ; g*8 + (j>>2)\ns_lshl2_add_u32 s30, s15, s%d\ns_lshl_b32 s30, s30, 14" % (sj, sg, sW))
    a("s_and_b32 s32, s%d, 3\ns_lshl_b32 s31, s32, 8\ns_add_u32 s30, s30, s31\ns_add_u32 s30, s30, 4096" % sj)
    a("v_lshl_add_u32 v%d, v%d, 10, v%d\nv_add_u32 v%d, s30, v%d\nv_add_u32 v%d, 0x2000, v%d" % (ao0, vG, t5, ao0, ao0, ao1, ao0))
    if pol is None:
        a("s_lshl_b32 s32, s32, 16\ns_lshl_b32 s15, s15, 10\ns_add_u32 s15, s15, s32\ns_add_u32 s15, s15, %d\nv_add_u32 v%d, s15, v%d" % (SP, aps, vl16))
    else:
        a("s_lshl_b32 s15, s14, 10\ns_lshl_b32 s31, s%d, 14\ns_add_u32 s15, s15, s31\ns_and_b32 s31, s32, 1\ns_lshl_b32 s31, s31, 17\ns_add_u32 s15, s15, s31" % sg)
        a("s_lshr_b32 s31, s32, 1\ns_xor_b32 s31, s31, %d\ns_lshl_b32 s31, s31, 13\ns_add_u32 s15, s15, s31\ns_add_u32 s15, s15, %d\nv_add_u32 v%d, s15, v%d" % (pol, SP, aps, vl16))
    a("v_lshlrev_b32 v%d, 5, v%d" % (lml, t4))
    a("s_lshl_b32 s32, s%d, 11\nv_add_u32 v%d, s32, v%d" % (sW, low, vl16))
    a("v_and_b32 v%d, 1, v0\nv_lshrrev_b32 v%d, 1, v0\ns_lshl_b32 s32, s%d, 8\nv_lshl_add_u32 v%d, v%d, 4, s32\nv_lshl_add_u32 v%d, v%d, 10, v%d" % (t2, t3, sW, lor, t3, lor, t2, lor))
    a("s_lshl_b32 s32, s%d, 9\nv_add_u32 v%d, s32, v%d" % (sW, lsw, vl16))
    a("s_lshl_b32 s30, s%d, 16\ns_add_u32 s30, s30, %d\ns_lshl_b32 s31, s47, 9\ns_add_u32 s31, s31, s30\nv_add_u32 v%d, s31, v%d" % (sg, OP, apo, vl16))
    a("s_lshl2_add_u32 s31, s14, s%d\ns_lshl_b32 s31, s31, 6\ns_add_u32 s30, s30, s31" % sW)
    a("v_lshrrev_b32 v%d, 2, v0\nv_lshl_add_u32 v%d, v%d, 11, v%d\nv_add_u32 v%d, s30, v%d\nv_add_u32 v%d, 0x8000, v%d" % (t2, ago0, t2, t7, ago0, ago0, ago1, ago0))
    a("v_lshlrev_b32 v%d, 1, v0\nv_lshrrev_b32 v%d, 1, v0\nv_and_b32 v%d, 16, v%d\nv_and_or_b32 v%d, v%d, 8, v%d\nv_xor_b32 v%d, s%d, v%d" % (t1, t2, t1, t1, t1, t2, t1, t1, sj, t1))
    if h2:
        a("v_and_b32 v%d, 1, v0\nv_bfe_u32 v%d, v0, 3, 1\nv_lshl_or_b32 v%d, v%d, 1, v%d\nv_bfe_u32 v%d, v0, 1, 2\nv_lshl_or_b32 v%d, v%d, 2, v%d" % (t2, t3, t2, t3, t2, t3, t2, t3, t2))
        a("s_lshl_b32 s30, s%d, 7\ns_lshl2_add_u32 s30, s%d, s30\ns_add_u32 s30, s30, %d\nv_lshl_add_u32 v%d, v%d, 12, s30\nv_lshlrev_b32 v%d, 3, v0" % (sj, sg, HP, ahs, t2, vr8))
    elif pol is not None:
        a("v_and_b32 v%d, 1, v0\nv_bfe_u32 v%d, v0, 2, 1\nv_xor_b32 v%d, %d, v%d\nv_lshl_or_b32 v%d, v%d, 1, v%d\nv_bfe_u32 v%d, v0, 1, 1\nv_lshl_or_b32 v%d, v%d, 2, v%d" % (t2, t3, t3, pol, t3, t2, t3, t2, t3, t2, t3, t2))
        a("s_lshl2_add_u32 s30, s%d, %d\nv_lshl_add_u32 v%d, v%d, 7, s30\nv_lshl_add_u32 v%d, v%d, 12, v%d\nv_lshlrev_b32 v%d, 3, v0" % (sg, HP, ahs, t1, ahs, t2, ahs, vr8))
    elif hsp:
        a("s_and_b32 s31, s%d, 7\ns_lshl_b32 s31, s31, 12\ns_lshl2_add_u32 s30, s%d, s31\ns_add_u32 s30, s30, %d\nv_lshrrev_b32 v%d, 3, v%d\nv_lshl_add_u32 v%d, v%d, 7, s30\nv_lshl_add_u32 v%d, v%d, 9, v%d\nv_lshlrev_b32 v%d, 3, v0" % (sj, sg, HP, t1, t1, ahs, t1, ahs, vc8, ahs, vr8))
    else:
        a("s_lshl2_add_u32 s30, s%d, %d\nv_lshl_add_u32 v%d, v%d, 7, s30\nv_lshl_add_u32 v%d, v%d, 12, v%d\nv_lshlrev_b32 v%d, 3, v0" % (sg, HP, ahs, t1, ahs, vc8, ahs, vr8))
    a("s_cmp_eq_u32 s%d, 3\ns_cselect_b32 s46, 1, 0" % sW)
    mktag(False)
    a("v_mov_b32 v%d, s%d\nv_mov_b32 v%d, 0" % (OGR+3, sT, t7))
    for r in qr[XR:]:
        a("s_barrier"); SA.issue()
    SA.land("k7")
    stamp("k")
    if b3pos > 7: SA.land(SA.names[b3pos])
    a("s_barrier")
    stamp("b3")
    a("ds_read_b128 %s, v%d offset:%d\nds_read_b32 v%d, v%d offset:%d" % (vr(QF, 4), lqr, L_QB, t7, t7, L_FL))
    SA.tick()
    a("s_waitcnt lgkmcnt(1)")
    for i in range(8): mfma32(S0+4*i, KK+4*i, QF, True)
    a("s_waitcnt lgkmcnt(0)\nv_readfirstlane_b32 s%d, v%d" % (sFlag, t7))
    for c in range(4):
        for i in range(8):
            if c == 0: a("v_mov_b32_dpp v%d, v%d %s" % (u0+i, S0+4*i, qp(0)))
            else: a("v_add_f32_dpp v%d, v%d, v%d %s" % (u0+i, S0+4*i+c, u0+i, qp(c)))
    SA.tick()
    for i in range(4): a("v_cndmask_b32 v%d, v%d, v%d, s[48:49]" % (u0+2*i, u0+2*i, u0+2*i+1))
    a("v_cndmask_b32 v%d, v%d, v%d, s[50:51]\nv_cndmask_b32 v%d, v%d, v%d, s[50:51]" % (u0, u0, u0+2, u0+1, u0+4, u0+6))
    a("v_cvt_pk_bf16_f32 v%d, v%d, v%d" % (t0, u0, u0+1)); unpack(u0, t0)
    a("v_mul_f32 v%d, 0x%x, v%d\nv_mul_f32 v%d, 0x%x, v%d" % (u0, SCALE, u0, u0+1, SCALE, u0+1))
    a("v_cvt_pk_bf16_f32 v%d, v%d, v%d" % (t0, u0, u0+1)); unpack(u0, t0)
    a("v_max_f32 v%d, v%d, v%d" % (t0, u0, u0+1))
    a("v_max_f32_dpp v%d, v%d, v%d quad_perm:[1,0,3,2] %s\nv_max_f32_dpp v%d, v%d, v%d quad_perm:[2,3,0,1] %s" % (t0, t0, t0, DPPM, t0, t0, t0, DPPM))
    swapred("v_max_f32", [t0], [t1])
    a("v_sub_f32 v%d, v%d, v%d\nv_sub_f32 v%d, v%d, v%d" % (u0, u0, t0, u0+1, u0+1, t0))
    a("v_mul_f32 v%d, 0x%x, v%d\nv_mul_f32 v%d, 0x%x, v%d\nv_mul_f32 v%d, 0x%x, v%d" % (u0, LOG2E, u0, u0+1, LOG2E, u0+1, t0, LOG2E, t0))
    a("v_exp_f32 v%d, v%d\nv_exp_f32 v%d, v%d" % (u0, u0, u0+1, u0+1))
    a("s_lshl_b32 s30, s%d, 3\nv_add_u32 v%d, s30, v%d" % (sW, t4, lml))
    a("v_add_f32 v%d, v%d, v%d" % (t1, u0, u0+1))
    a("v_add_f32_dpp v%d, v%d, v%d quad_perm:[1,0,3,2] %s\nv_add_f32_dpp v%d, v%d, v%d quad_perm:[2,3,0,1] %s" % (t1, t1, t1, DPPM, t1, t1, t1, DPPM))
    swapred("v_add_f32", [t1], [t2])
    a("ds_write_b64 v%d, %s offset:%d" % (t4, vr(t0, 2), L_ML))
    SA.tick()
    a("s_waitcnt lgkmcnt(0)\ns_barrier")
    a("ds_read_b128 %s, v%d offset:%d\nds_read_b128 %s, v%d offset:%d" % (vr(w0, 4), lml, L_ML, vr(w0+4, 4), lml, L_ML + 16))
    a("s_lshl_b32 s30, s%d, 2" % sW)
    a("s_waitcnt lgkmcnt(0)")
    a("v_max3_f32 v%d, v%d, v%d, v%d\nv_max_f32 v%d, v%d, v%d  ; M (log2 units)" % (t2, w0, w0+2, w0+4, t2, t2, w0+6))
    for i in range(4): a("v_sub_f32 v%d, v%d, v%d" % (w0+2*i, w0+2*i, t2))
    a("v_sub_f32 v%d, v%d, v%d" % (t0, t0, t2))
    for i in range(4): a("v_exp_f32 v%d, v%d" % (w0+2*i, w0+2*i))
    a("v_exp_f32 v%d, v%d" % (t0, t0))
    a("v_mul_f32 v%d, v%d, v%d" % (t1, w0, w0+1))
    for i in range(1, 4): a("v_fmac_f32 v%d, v%d, v%d" % (t1, w0+2*i, w0+2*i+1))
    a("v_rcp_f32 v%d, v%d\nv_log_f32 v%d, v%d" % (t4, t1, t1, t1))
    a("v_mul_f32 v%d, v%d, v%d\nv_add_f32 v%d, v%d, v%d  ; f, lse2" % (t0, t0, t4, t1, t1, t2))
    a("v_mul_f32 v%d, v%d, v%d\nv_mul_f32 v%d, v%d, v%d" % (u0, u0, t0, u0+1, u0+1, t0))
    a("v_readlane_b32 s40, v%d, s30" % t1)
    a("v_cvt_pk_bf16_f32 v%d, v%d, v%d\nv_cvt_pk_bf16_f32 v%d, v%d, v%d" % (u0, u0, u0, u0+1, u0+1, u0+1))
    a("v_mov_b32 v%d, s40" % (OGR+2))
    stamp("p")
    for i in range(8):
        for e in range(2): a("v_and_b32_dpp v%d, v%d, v%d %s" % (PA+2*i+e, u0+(i >> 2), Ma+e, qp(i & 3)))
        if i > 0:
            SA.land("v%d" % (i-1))
            for v in range(2): a("v_mfma_f32_16x16x16_bf16 %s, %s, %s, %s" % (vr(acc+4*v, 4), vr(PA+2*i-2, 2), vr(VV+4*i-4+2*v, 2), vr(acc+4*v, 4) if i > 1 else "0"))
    while SA.pos < SA.N: SA.issue()
    a("s_cmp_lg_u32 s%d, 0" % sFlag)
    SA.land("v7")
    for v in range(2): a("v_mfma_f32_16x16x16_bf16 %s, %s, %s, %s" % (vr(acc+4*v, 4), vr(PA+14, 2), vr(VV+28+2*v, 2), vr(acc+4*v, 4)))
    stamp("v")
    a("ds_write_b128 v%d, %s offset:%d\nds_write_b128 v%d, %s offset:%d" % (low, vr(acc, 4), L_O, low, vr(acc+4, 4), L_O + 1024))
    warm(kw5w)
    a("s_mov_b32 exec_hi, 0")
    a("s_waitcnt lgkmcnt(0)\ns_barrier")
    for ww in range(4): a("ds_read_b128 %s, v%d offset:%d" % (vr((u0, u0+4, w0, w0+4)[ww], 4), lor, L_O + 2048*ww))
    warm(kw5)
    for k, r in enumerate((u0+4, w0, w0+4)):
        a("s_waitcnt lgkmcnt(%d)" % (2-k)); add4(u0, u0, r)
    a("v_cvt_pk_bf16_f32 v%d, v%d, v%d\nv_cvt_pk_bf16_f32 v%d, v%d, v%d" % (OGR, u0, u0+1, OGR+1, u0+2, u0+3))
    a("s_cbranch_scc1 L_oslow")
    a("global_store_dwordx4 v%d, %s, %s" % (apo, vr(OGR, 4), sp(sWS)))
    a("L_opub:")
    tail.extend(["L_oslow:", "    global_store_dwordx4 v%d, %s, %s sc1" % (apo, vr(OGR, 4), sp(sWS)), "    s_branch L_opub"])
    stamp("opub")
    a(FULL)
    if lf: a("v_lshlrev_b32 v%d, 2, v%d\ns_lshl_b32 s30, s%d, 2\nv_mov_b32 v%d, s30" % (lml, vc4, sW, low))
    warm(od)
    def go():
        a("global_load_dwordx4 %s, v%d, %s sc1" % (vr(OG, 4), ago0, sp(sWS)))
        a("global_load_dwordx4 %s, v%d, %s sc1" % (vr(OG+4, 4), ago1, sp(sWS)))
    loop_poll("L_o", 1, lambda: a("v_cmp_ne_u32 vcc, s%d, v%d\nv_cmp_ne_u32 s[30:31], s%d, v%d\ns_or_b64 vcc, vcc, s[30:31]" % (sT, OG+3, sT, OG+7)), go, between=lambda: warm(kwo))
    stamp("og")
    if nh and hpos == 'og':
        a("s_cmp_eq_u32 s46, 0\ns_cbranch_scc1 L_nh\ns_mov_b32 exec_lo, " + HEX + "\ns_mov_b32 exec_hi, 0\n%s\n%s\nL_nh:" % (HOP % (ahs, OGR+3, sp(sWS)), FULL))
    a("v_max_f32 v%d, v%d, v%d" % (t0, OG+2, OG+6))
    unpack(u0, OG)
    rorred("v_max_f32", [t0], [4])
    unpack(u0+2, OG+1)
    rorred("v_max_f32", [t0], [8])
    a("v_mov_b32 v%d, v%d" % (t1, t0)); unpack(u0+4, OG+4)
    a("v_permlane16_swap_b32 v%d, v%d\nv_max_f32 v%d, v%d, v%d" % (t0, t1, t0, t0, t1))
    a("v_mov_b32 v%d, v%d" % (t1, t0)); unpack(u0+6, OG+5)
    a("v_permlane32_swap_b32 v%d, v%d\nv_max_f32 v%d, v%d, v%d" % (t0, t1, t0, t0, t1))
    a("v_sub_f32 v%d, v%d, v%d\nv_sub_f32 v%d, v%d, v%d" % (t2, OG+2, t0, t4, OG+6, t0))
    a("v_exp_f32 v%d, v%d\nv_exp_f32 v%d, v%d" % (t2, t2, t4, t4))
    a("v_pk_mul_f32 %s, %s, %s op_sel_hi:[1,0]\nv_pk_mul_f32 %s, %s, %s op_sel_hi:[1,0]" % (vr(u0, 2), vr(u0, 2), vr(t2, 2), vr(u0+2, 2), vr(u0+2, 2), vr(t2, 2)))
    a("v_add_f32 v%d, v%d, v%d\nv_add_f32 v%d, v%d, v%d" % (t0, t2, t4, t1, t2, t4))
    a("v_pk_fma_f32 %s, %s, %s, %s op_sel_hi:[1,0,1]\nv_pk_fma_f32 %s, %s, %s, %s op_sel_hi:[1,0,1]" % (vr(u0, 2), vr(u0+4, 2), vr(t4, 2), vr(u0, 2), vr(u0+2, 2), vr(u0+6, 2), vr(t4, 2), vr(u0+2, 2)))
    a("v_permlane32_swap_b32 v%d, v%d" % (t0, t1))
    a("v_add_f32 v%d, v%d, v%d\nv_add_f32 v%d, v%d, v%d" % (t2, t0, t1, t3, t0, t1))
    a("v_permlane32_swap_b32 v%d, v%d\nv_permlane32_swap_b32 v%d, v%d" % (u0, u0+2, u0+1, u0+3))
    pkadd(u0, u0, u0+2)
    a("v_permlane16_swap_b32 v%d, v%d\nv_add_f32 v%d, v%d, v%d" % (t2, t3, t2, t2, t3))
    a("v_permlane16_swap_b32 v%d, v%d\nv_add_f32 v%d, v%d, v%d" % (u0, u0+1, u0, u0, u0+1))
    rorred("v_add_f32", [t2, u0], (4, 8))
    a("v_rcp_f32 v%d, v%d" % (t2, t2))
    if nh and hpos == 'rcp':
        a("s_cmp_eq_u32 s46, 0\ns_cbranch_scc1 L_nh\ns_mov_b32 exec_lo, " + HEX + "\ns_mov_b32 exec_hi, 0\n%s\n%s\nL_nh:" % (HOP % (ahs, OGR+3, sp(sWS)), FULL))
    a("v_mul_f32 v%d, v%d, v%d\nv_cvt_pk_bf16_f32 v%d, v%d, v%d" % (u0, u0, t2, u0, u0, u0))
    for t in range(4):
        for q in range(4): a("v_and_b32_dpp v%d, v%d, v%d %s" % (AO+4*t+q, u0, M+q, qp(t)))
        if t > 0: mfma32(acc, AO+4*t-4, WO+4*t-4, t == 1)
    mfma32(acc, AO+12, WO+12, False)
    if nh and hpos == 'mfma':
        a("s_cmp_eq_u32 s46, 0\ns_cbranch_scc1 L_nh\ns_mov_b32 exec_lo, " + HEX + "\ns_mov_b32 exec_hi, 0\n%s\n%s\nL_nh:" % (HOP % (ahs, OGR+3, sp(sWS)), FULL))
    if not lf:
        a("s_cmp_lg_u32 s%d, 0" % sW)
        a("s_mov_b32 exec_hi, 0")
        a("ds_write_b128 v%d, %s offset:%d" % (lsw, vr(acc, 4), L_S))
        warm(kw6w)
        a("s_waitcnt lgkmcnt(0)\ns_barrier")
        a("s_cbranch_scc1 L_nopub")
        a(FULL)
        a("ds_read2st64_b64 %s, v%d offset0:%d offset1:%d" % (vr(u0, 4), vr8, L_S // 512, L_S // 512 + 1))
        a("ds_read2st64_b64 %s, v%d offset0:%d offset1:%d" % (vr(u0+4, 4), vr8, L_S // 512 + 2, L_S // 512 + 3))
        a("ds_read_b64 %s, v%d offset:%d" % (vr(acc+2, 2), vr8, L_Y))
        a("s_waitcnt lgkmcnt(2)"); pkadd(u0, u0, u0+2)
        a("s_waitcnt lgkmcnt(1)"); pkadd(u0+4, u0+4, u0+6); pkadd(acc, u0, u0+4)
        a("s_waitcnt lgkmcnt(0)")
    else:
        a("s_cmp_lg_u32 s%d, 0" % sW)
        a("s_mov_b32 exec_hi, 0")
        a("ds_write_b128 v%d, %s offset:%d" % (lsw, vr(acc, 4), L_S))
        a("ds_write_b32 v%d, v%d offset:%d" % (low, vFF, L_G - 4))
        a("s_cbranch_scc1 L_nopub")
        a(FULL)
        a("L_g:")
        a("ds_read_b32 v%d, v%d offset:%d" % (t0, lml, L_G))
        a("ds_read2st64_b64 %s, v%d offset0:%d offset1:%d" % (vr(u0, 4), vr8, L_S // 512, L_S // 512 + 1))
        a("ds_read2st64_b64 %s, v%d offset0:%d offset1:%d" % (vr(u0+4, 4), vr8, L_S // 512 + 2, L_S // 512 + 3))
        a("ds_read_b64 %s, v%d offset:%d" % (vr(acc+2, 2), vr8, L_Y))
        a("s_waitcnt lgkmcnt(3)\nv_cmp_eq_u32 vcc, 0, v%d\ns_cmp_lg_u64 vcc, 0\ns_cbranch_scc1 L_g" % t0)
        a("s_waitcnt lgkmcnt(2)"); pkadd(u0, u0, u0+2)
        a("s_waitcnt lgkmcnt(1)"); pkadd(u0+4, u0+4, u0+6); pkadd(acc, u0, u0+4)
        a("s_waitcnt lgkmcnt(0)")
    tagify(acc)
    a("global_store_dwordx4 v%d, %s, %s sc1" % (aps, vr(acc, 4), sp(sWS)))
    stamp("spub")
    if hpos == 'post' and nh: a("s_mov_b32 exec_lo, " + HEX + "\ns_mov_b32 exec_hi, 0\n" + HOP % (ahs, OGR+3, sp(sWS)))
    if hpos == 'b6' or lf:
        a("s_branch L_nopub2")
    a("L_nopub:")
    if lf and hpos != 'b6': a("L_nopub2:")
    if hpos == 'b6':
        a("s_cmp_eq_u32 s46, 0\ns_cbranch_scc1 L_nopub2\ns_mov_b32 exec_lo, " + HEX + "\n" + HOP % (ahs, OGR+3, sp(sWS)))
        a("L_nopub2:")
    if wb == 'b6': a("s_cmp_lg_u32 s47, 3\ns_cbranch_scc1 L_nwb\nbuffer_wbl2 sc1\nL_nwb:")
    if stamps: a("s_add_u32 s%d, s%d, 2\ns_branch L_done" % (sW, sW))
    else: a("s_endpgm")

    def final_consts():
        a("s_lshl_b32 s%d, s%d, 5\ns_add_u32 s%d, s%d, s%d" % (sCQ, sg, sCQ, sCQ, sj))
        a("s_lshr_b32 s14, s%d, 1\ns_lshl_b32 s30, s14, 16" % sg)
        if ocont:
            a("s_bfe_u32 s31, s%d, 0x10001\ns_and_b32 s15, s%d, 1\ns_lshl1_add_u32 s31, s31, s15\ns_lshr_b32 s15, s%d, 2\ns_lshl3_add_u32 s31, s31, s15\ns_and_b32 s15, s%d, 1\ns_lshl1_add_u32 s31, s31, s15" % (sj, sg, sj, sj))
        else: a("s_and_b32 s31, s%d, 63" % sCQ)
        a("s_lshl4_add_u32 s30, s31, s30\ns_add_u32 s30, s30, %d" % SP)
        if pol is None: a("v_lshl_add_u32 v%d, v0, 10, s30" % ags)
        else:
            a("s_lshl_b32 s30, s31, 4\ns_and_b32 s31, s14, 1\ns_lshl_b32 s31, s31, 17\ns_add_u32 s30, s30, s31\ns_lshr_b32 s31, s14, 1\ns_xor_b32 s31, s31, %d\ns_lshl_b32 s31, s31, 13\ns_add_u32 s30, s30, s31\ns_add_u32 s30, s30, %d" % (pol, SP))
            a("v_lshl_add_u32 v%d, v%d, 10, s30\nv_lshl_add_u32 v%d, v%d, 14, v%d" % (ags, vc8, ags, vr8, ags))
        if ocont: a("s_lshl_b32 s30, s%d, 2" % sCQ)
        else: a("s_lshr_b32 s30, s%d, 1\ns_lshl4_add_u32 s30, s14, s30\ns_and_b32 s31, s%d, 1\ns_lshl1_add_u32 s30, s30, s31\ns_and_b32 s31, s%d, 1\ns_lshl1_add_u32 s30, s30, s31\ns_lshl_b32 s30, s30, 2" % (sj, sg, sj))
        a("v_and_b32 v%d, 1, v%d\nv_lshl_add_u32 v%d, v%d, 1, s30\nv_mov_b32 v%d, 0" % (vr8, vG, vr8, vr8, XO))
    a("L_F1:")
    a("s_mov_b32 s15, s34")
    masks()
    def f_ln():
        if -1 in qr and not XR:
            a("s_barrier")
            for k in range(fper): SF.issue()
        SF.wait("x")
        layernorm(XX, [XF], SF)
        for r in qr:
            if r < 0: continue
            if early and r >= 16: continue
            a("s_barrier")
            for k in range(fper): SF.issue()
    if early:
        f_ln()
        a("L_F1n:")
    a("v_and_b32 v%d, 1, v%d\nv_lshl_add_u32 v%d, v%d, 1, v%d\nv_lshl_add_u32 v%d, v%d, 4, s15\nv_lshrrev_b32 v%d, 5, v0\nv_lshl_add_u32 v%d, v%d, 8, v%d" % (t1, vG, t3, vc8, t1, apf, t3, t2, apf, t2, apf))
    a("s_lshr_b32 s14, s40, 2\ns_lshl_b32 s30, s47, 12\ns_lshl_b32 s31, s14, 7\ns_add_u32 s30, s30, s31\ns_add_u32 s30, s30, %d" % FA)
    a("v_lshl_add_u32 v%d, v%d, 4, s30\nv_lshl_add_u32 v%d, v%d, 9, v%d" % (agf, vc8, agf, vr8, agf))
    a("s_lshl1_add_u32 s14, s47, s14\ns_and_b32 s15, s40, 3\ns_lshl_b32 s30, s14, 15\ns_lshl_b32 s31, s15, 8\ns_add_u32 s30, s30, s31\ns_add_u32 s30, s30, 4096")
    a("v_and_b32 v%d, 15, v0\nv_lshl_add_u32 v%d, v%d, 4, s30\nv_lshl_add_u32 v%d, v%d, 10, v%d" % (t2, ad, t2, ad, vG, ad))
    final_consts()
    if h2: a("s_and_b32 s30, s%d, 63\ns_lshl_b32 s30, s30, 7\ns_lshr_b32 s31, s%d, 1\ns_lshl_b32 s31, s31, 14\ns_add_u32 s30, s30, s31" % (sCQ, sg))
    elif pol is not None:
        a("s_and_b32 s30, s%d, 1\ns_lshr_b32 s31, s%d, 2\ns_xor_b32 s31, s31, %d\ns_lshl1_add_u32 s30, s31, s30\ns_bfe_u32 s31, s%d, 0x10001\ns_lshl2_add_u32 s30, s31, s30\ns_lshl_b32 s30, s30, 5\ns_add_u32 s30, s30, s%d\ns_lshl_b32 s30, s30, 7" % (sg, sg, pol, sg, sj))
    elif hsp: a("s_lshl_b32 s30, s46, 7\ns_lshl_b32 s31, s40, 12\ns_add_u32 s30, s30, s31")
    else: a("s_lshl_b32 s30, s%d, 7" % sCQ)
    a("s_add_u32 s30, s30, %d\ns_add_u32 s24, s%d, s30\ns_addc_u32 s25, s%d, 0" % (HP, sWS, sWS+1))
    mktag(True)

    a("s_bitcmp0_b32 0x%x, s46\ns_cbranch_scc1 L_F2" % fmask)
    a("global_load_short_d16_hi v%d, v%d, %s" % (XO, vr8, sp(sX)))
    a("v_mov_b64 %s, 0\nv_mov_b64 %s, 0" % (vr(accf+4, 2), vr(accf+6, 2)))
    SP_.issued.append("xo")
    for r in ([] if early else qr):
        a("s_barrier")
        for k in range(fper): SP_.issue()
    if vpf: SP_.land(pseq[max(0, len(pseq) - WF - 1)][0])
    assert SP_.pos == SP_.N
    a("s_barrier\ns_barrier\ns_barrier")
    if warmh: a("s_load_dwordx8 s[4:11], s[24:25], 0 glc" + ("\ns_load_dwordx8 s[12:19], s[24:25], 0x2000 glc" if h2 else ""))
    a("s_branch L_ytag")
    a("L_F2:")
    if not early: f_ln()
    else:
        for r in qr:
            if r >= 16:
                a("s_barrier")
                for k in range(fper): SF.issue()
    for t in range(8):
        for q in range(4): a("v_and_b32_dpp v%d, v%d, v%d %s" % (AF+4*(t & 1)+q, u0+(t & 1), M+q, qp(t >> 1)))
        for b in range(2):
            SF.land("f%d" % (2*t+b))
            mfma32(accf+4*b, AF+4*(t & 1), GU+8*t+4*b, t == 0)
    while SF.pos < SF.N: SF.issue()
    for i in range(4): a("v_permlane32_swap_b32 v%d, v%d" % (accf+i, accf+4+i))
    for i in range(4): a("v_add_f32_dpp v%d, v%d, v%d row_ror:8 %s" % (accf+i, accf+4+i, accf+i, DPPM))
    if force_slow: a("s_xor_b32 s30, s%d, 0x40" % sTA)
    tagify(accf, 30 if force_slow else sTA)
    a("s_mov_b32 exec_lo, 0x00ff00ff\ns_mov_b32 exec_hi, 0x00ff00ff")
    a("global_store_dwordx4 v%d, %s, %s" % (apf, vr(accf, 4), sp(sWS)))
    a(FULL)
    stamp("fpub")
    a("global_load_short_d16_hi v%d, v%d, %s" % (XO, vr8, sp(sX)))
    a("s_barrier\ns_barrier")
    def gf():
        a("global_load_dwordx4 %s, v%d, %s sc1" % (vr(FG, 4), agf, sp(sWS)))
        a("global_load_dwordx4 %s, v%d, %s offset:256 sc1" % (vr(FG+4, 4), agf, sp(sWS)))
    if fgw: a("s_waitcnt vmcnt(0)")
    gf()
    for x in dseq: a(x[1])
    a("s_barrier")
    if warmh: a("s_load_dwordx8 s[4:11], s[24:25], 0 glc" + ("\ns_load_dwordx8 s[12:19], s[24:25], 0x2000 glc" if h2 else ""))
    a("s_waitcnt vmcnt(%d)" % dlate)
    def fpre():
        ab_switch("L_f", accf, apf, 0x00ff00ff, 0x00ff00ff, agf, FA ^ FB)
    poll("L_f", 2, lambda: untag([FG, FG+4], t0, sTA), gf, fpre)
    tred4([FG, FG+4])
    rorred("v_add_f32", [FG, FG+4], [8])
    a("v_cvt_pk_bf16_f32 v%d, v%d, v%d" % (t0, FG, FG+4)); unpack(FG, t0)
    silu([FG], [t0]); rbf(FG)
    a("v_mul_f32 v%d, v%d, v%d\nv_cvt_pk_bf16_f32 v%d, v%d, v%d" % (FG, FG, FG+1, FG, FG, FG))
    for t in range(8):
        for q in range(4): a("v_and_b32_dpp v%d, v%d, v%d row_newbcast:%d %s" % (AF+4*(t & 1)+q, FG, M+q, t, DPPM))
        if t >= 8 - dlate: a("s_waitcnt vmcnt(%d)" % (7 - t))
        mfma32(accf+4, AF+4*(t & 1), DD+4*t, t == 0)
    a("L_ytag:")
    a("s_mov_b32 exec_hi, 0")
    a("ds_write_b128 v%d, %s offset:%d" % (vl16, vr(accf+4, 4), L_Y))
    a(FULL)
    a("s_mov_b32 s32, s%d\ns_mov_b32 s%d, %d" % (sT, sSpin, maxspin))
    if not warmh: a("s_not_b32 s4, s%d" % sT)
    stamp("ypub")
    if lf: a("v_mov_b32 v%d, 0\nv_mov_b32 v%d, 1\nds_write_b32 v%d, v%d offset:%d" % (t0, t1, t0, t1, L_G + 12))
    else: a("s_waitcnt lgkmcnt(0)\ns_barrier")
    if h2:
        def hchk(b, last):
            a("s_xor_b64 s[48:49], %s, s[32:33]\ns_xor_b64 s[50:51], %s, s[32:33]\ns_xor_b64 s[30:31], %s, s[32:33]\ns_xor_b64 s[34:35], %s, s[32:33]" % (sp(b), sp(b+2), sp(b+4), sp(b+6)))
            a("s_or_b64 s[48:49], s[48:49], s[50:51]\ns_or_b64 s[30:31], s[30:31], s[34:35]\ns_or_b64 s[48:49], s[48:49], s[30:31]")
            a("s_cbranch_scc1 L_h" if last else "s_cbranch_scc0 L_hok")
        a("L_h:")
        a("s_load_dwordx8 s[4:11], s[24:25], 0 glc\ns_load_dwordx8 s[12:19], s[24:25], 0x2000 glc")
        a("s_sub_u32 s%d, s%d, 1\ns_cbranch_scc1 L_hok" % (sSpin, sSpin))
        a("s_waitcnt lgkmcnt(%d)" % hfree)
        for rr_ in range(hnop): hchk(4 + 8*(rr_ & 1), rr_ == hnop - 1)
        a("L_hok:")
        if stamps: a("s_sub_u32 s%d, %d, s%d" % (NP0 + 3, maxspin - 1, sSpin))
    elif nh:
        a("L_h:")
        a("s_load_dwordx8 s[4:11], s[24:25], 0 glc")
        a("s_sub_u32 s%d, s%d, 1\ns_cbranch_scc1 L_hok" % (sSpin, sSpin))
        for rr_ in range(max(1, hnop)):
            if rr_ == 0: a("s_waitcnt lgkmcnt(%d)" % hfree)
            for i in range(4): a("s_xor_b64 %s, %s, s[32:33]" % (sp(12+2*i), sp(4+2*i)))
            a("s_or_b64 s[12:13], s[12:13], s[14:15]\ns_or_b64 s[16:17], s[16:17], s[18:19]\ns_or_b64 s[12:13], s[12:13], s[16:17]")
            a("s_cbranch_scc1 L_h" if rr_ == max(1, hnop) - 1 else "s_cbranch_scc0 L_hok")
        a("L_hok:")
        if stamps: a("s_sub_u32 s%d, %d, s%d" % (NP0 + 3, maxspin - 1, sSpin))
    stamp("yg")
    def res(): a("global_load_dwordx4 %s, v%d, %s sc1" % (vr(w0, 4), ags, sp(sWS)))
    if wb == 'yg':
        res()
        a("s_cmp_lg_u32 s%d, 31\ns_cbranch_scc1 L_nwb\nbuffer_wbl2 sc1\ns_waitcnt vmcnt(1)" % sj)
        untag([w0], t0)
        a("s_and_b64 exec, exec, vcc\ns_cbranch_scc0 L_sok")
        res()
        a("L_nwb:")
    loop_poll("L_s", 4, lambda: untag([w0], t0), res, first_issued=(wb == 'yg'))
    if wb == 'yg': a("L_sok:\n" + FULL)
    if wb == 'sg': a("s_cmp_lg_u32 s%d, 31\ns_cbranch_scc1 L_nwb\nbuffer_wbl2 sc1\nL_nwb:" % sj)
    stamp("sg")
    tred4([w0])
    rorred("v_add_f32", [w0], (8, 4, 2, 1))
    rbf(w0)
    a("v_mul_f32 v%d, 0x%x, v%d\nv_exp_f32 v%d, v%d" % (t0, LOG2E | 0x80000000, w0, t0, t0))
    a("v_mov_b32 v%d, v%d" % (u0, w0))
    a("v_add_f32 v%d, 1.0, v%d\nv_rcp_f32 v%d, v%d" % (t0, t0, t0, t0))
    a("v_permlane32_swap_b32 v%d, v%d  ; upper lanes of the first operand receive s" % (u0+2, u0))
    a("v_mul_f32 v%d, v%d, v%d" % (w0, w0, t0))
    rbf(w0)
    a("s_mov_b32 exec_lo, 0\ns_mov_b32 exec_hi, 0x00010001")
    a("v_mul_f32 v%d, v%d, v%d" % (u0, u0+2, w0))
    rbf(u0)
    a("v_add_f32 v%d, v%d, v%d" % (u0, u0, XO))
    a("v_cvt_pk_bf16_f32 v%d, v%d, v%d" % (u0, u0, u0))
    a("global_store_short v%d, v%d, %s %s" % (vr8, u0, sp(sOUT), outfl))
    a("s_cmp_lg_u32 s%d, 0\ns_cbranch_scc1 L_done" % sCQ)
    a("s_mov_b64 exec, 1\nv_mov_b32 v%d, 0\nv_mov_b32 v%d, s%d" % (t0, t1, sT))
    a("global_store_dword v%d, v%d, %s %s" % (t0, t1, sp(sWS), ep))
    a("L_done:")
    stamp("end")
    if probe is not None:
        a("s_waitcnt lgkmcnt(0)")
        a("s_cmp_lg_u32 s%d, 3\ns_cbranch_scc1 L_pr1" % sW)
        a("s_mov_b64 exec, 1\ns_lshl_b32 s30, s2, 7\ns_add_u32 s30, s30, %d\nv_mov_b32 v%d, s30\nv_mov_b32 v%d, s%d\nglobal_store_dword v%d, v%d, %s sc1" % (STAMP, t6, t7, st0, t6, t7, sp(sWS)))
        a("L_pr1:")
        a("s_cmp_lg_u32 s2, 0\ns_cbranch_scc1 L_end\ns_cmp_lg_u32 s%d, 1\ns_cbranch_scc1 L_end" % sW)
        a("s_add_u32 s30, s%d, 2500" % st0)
        a("L_pw0:\ns_memrealtime s[34:35]\ns_waitcnt lgkmcnt(0)\ns_sub_u32 s31, s34, s30\ns_cmp_lt_i32 s31, 0\ns_cbranch_scc1 L_pw0")
        a("s_mov_b64 exec, -1\nv_lshlrev_b32 v%d, 9, v0\nv_add_u32 v%d, %d, v%d" % (t4, t4, STAMP, t4))
        for i in range(4): a("global_load_dword v%d, v%d, %s offset:%d sc1" % (t0+i, t4, sp(sWS), 128*i))
        a("s_waitcnt vmcnt(0)")
        for i in range(4): a("v_subrev_u32 v%d, s%d, v%d" % (t0+i, st0, t0+i))
        if probe == "pol":
            a("s_mov_b64 exec, 1\nv_mov_b32 v%d, 0x1c0000\nv_mov_b32 v%d, 0\ns_movk_i32 s30, 200\nL_pl:\nglobal_atomic_add v%d, v%d, v%d, %s sc0\ns_waitcnt vmcnt(0)\ns_sub_u32 s30, s30, 1\ns_cbranch_scc0 L_pl\ns_endpgm" % (t5, t6, t7, t5, t6, sp(sWS))); probe = "start"
        if probe.startswith("wg"):
            kk = int(probe[2:]); a("v_readlane_b32 s%d, v%d, %d\ns_nop 3\ns_add_u32 s%d, s%d, s%d" % (st0+2, t0 + (kk & 3), kk >> 2, st0+2, st0+2, st0)); probe = "karg"
        op = "max" if probe.endswith("-max") else "min"
        a("v_%s3_i32 v%d, v%d, v%d, v%d\nv_%s_i32 v%d, v%d, v%d" % (op, t4, t0, t1, t2, op, t4, t4, t3))
        rorred("v_%s_i32" % op, [t4], (8, 4, 2, 1)); swapred("v_%s_i32" % op, [t4], [t6])
        a("v_readfirstlane_b32 s46, v%d" % t4)
        a("s_add_u32 s46, s46, s%d" % st0)
        k = STN.index(probe.replace("-max", ""))
        a("s_sub_u32 s30, s%d, s46\ns_mul_i32 s30, s30, 10\ns_add_u32 s30, s30, 4000\ns_min_u32 s30, s30, 100000\ns_add_u32 s30, s30, s%d" % (st0+2*k, st0))
        a("L_pw:\ns_memrealtime s[34:35]\ns_waitcnt lgkmcnt(0)\ns_sub_u32 s31, s34, s30\ns_cmp_lt_i32 s31, 0\ns_cbranch_scc1 L_pw")
    elif stamps:
        a("s_waitcnt lgkmcnt(0)\ns_cmp_lg_u32 s%d, 0\ns_cbranch_scc1 L_stw\ns_barrier\ns_barrier\n%sL_stw:" % (sW, "" if lf else "s_barrier\n"))
        a("s_mov_b64 exec, 1")
        a("s_mul_i32 s30, s2, 6\ns_add_u32 s30, s30, s%d\ns_lshl_b32 s30, s30, 7\ns_add_u32 s30, s30, %d\nv_mov_b32 v%d, s30" % (sW, STAMP, t0))
        a("s_add_u32 s30, s%d, 1200\nL_sw:\ns_memrealtime s[34:35]\ns_waitcnt lgkmcnt(0)\ns_sub_u32 s31, s34, s30\ns_cmp_lt_i32 s31, 0\ns_cbranch_scc1 L_sw" % st0)
        for i in range(len(STN)):
            a("v_mov_b32 v%d, s%d\nglobal_store_dword v%d, v%d, %s offset:%d" % (t1, st0+2*i, t0, t1, sp(sWS), 4*i))
        for i in range(5):
            a("s_mul_i32 s30, s%d, 100\ns_add_u32 s30, s30, s%d\nv_mov_b32 v%d, s30\nglobal_store_dword v%d, v%d, %s offset:%d" % (NP0+i, st0, t1, t0, t1, sp(sWS), 4*(len(STN)+i)))
    a("s_endpgm")
    a.lines.extend(tail)
    a("L_end:\ns_endpgm")
    nv = max(VA.hi, VF.hi, VQ.hi)
    text = fix_hazards(a.text())
    open(fn, "w").write(wrap(text, 256, 384, 12800, nv, 102 if stamps else 52, align=align))
    print(fn, "vgprs A/F/Q", VA.hi, VF.hi, VQ.hi)

if __name__ == "__main__":
    gen("v4.s")
    gen("v4_st.s", stamps=True)
    gen("v4_slow_st.s", stamps=True, force_slow=True)
    print(",".join(STN) + ",n0,n1,n2,n3,n4")
```

```python
from mk_best import *
import sys
st = len(sys.argv) > 1
def g(n, **kw):
    d = dict(best); d.update(stamps=st); d.update(kw); gen('w_%s.s' % n, **d)
g('a_nocont', ocont=False)
g('b_cont')
g('c_cont_sc1', outfl='sc1')
g('d_cont_nt', outfl='nt')
g('e_cont_pol0', pol=0)
g('f_nocont_pol0', pol=0, ocont=False)
```
